```python
import torch

def _softmax(x, axis=-1):
    return torch.softmax(x, dim=axis)
def _gelu(x):
    return torch.nn.functional.gelu(x, approximate="tanh")
def _silu(x):
    return torch.nn.functional.silu(x)
def _sigmoid(x):
    return torch.sigmoid(x)
def _layernorm(x, axis=-1, eps=1e-5):
    m = x.mean(dim=axis, keepdim=True)
    v = x.var(dim=axis, keepdim=True, unbiased=False)
    return (x - m) / torch.sqrt(v + eps)
def _scatter_add(tgt, idx, src, axis=0):
    return tgt.clone().index_add_(axis, idx, src)
def _segment_sum(src, seg, n):
    out = torch.zeros((n,) + src.shape[1:], dtype=src.dtype)
    return out.index_add_(0, seg, src)
def _pad(x, pw):
    flat = tuple(v for pair in reversed(pw) for v in pair)
    return torch.nn.functional.pad(x, flat)

kernel_name = 'sequential_preLN__gqa_block_cached__mixer_token_mlp__decode'

def setup_inputs():

    _w = (lambda a: (lambda t: t.to(torch.bfloat16) if t.is_floating_point() else t)(torch.as_tensor(a)))
    def _A_setup():
        B, Sq, D = 2, 1, 1024
        Hq, Hkv, Sk, Dh = 32, 4, 32768, 128
        assert Hq % Hkv == 0, (Hq, Hkv)
        return {
            "x": _w((lambda *s: torch.randn(*s, dtype=torch.bfloat16) * 0.05)(B, Sq, D)),
            "k_cache": _w((lambda *s: torch.randn(*s, dtype=torch.bfloat16) * 3.2)(B, Hkv, Sk, Dh)),
            "v_cache": _w((lambda *s: torch.randn(*s, dtype=torch.bfloat16) * 0.8)(B, Hkv, Sk, Dh)),
            "wq": _w((lambda *s: torch.randn(*s, dtype=torch.bfloat16) * 3.2)(D, Hq * Dh) * (D ** -0.5)),
            "wo": _w((lambda *s: torch.randn(*s, dtype=torch.bfloat16) * 0.8)(Hq * Dh, D) * ((Hq * Dh) ** -0.5)),
        }
    _A_in = _A_setup()

    def _B_setup():
        B, S, D, F = 2, 1, 1024, 3584
        return {
            "x": _w((lambda *s: torch.randn(*s, dtype=torch.bfloat16) * 0.05)(B, S, D)),
            "w1": _w((lambda *s: torch.randn(*s, dtype=torch.bfloat16) * 1.6)(S, F) * (S ** -0.5)),
            "b1": _w((lambda *s: torch.randn(*s, dtype=torch.bfloat16) * 1.6)(F) * 0.02),
            "w2": _w((lambda *s: torch.randn(*s, dtype=torch.bfloat16) * 1.6)(F, S) * (F ** -0.5)),
            "b2": _w((lambda *s: torch.randn(*s, dtype=torch.bfloat16) * 0.8)(S) * 0.02),
        }
    _B_in = _B_setup()

    return {
        "A_x": _A_in["x"],
        "A_k_cache": _A_in["k_cache"],
        "A_v_cache": _A_in["v_cache"],
        "A_wq": _A_in["wq"],
        "A_wo": _A_in["wo"],
        "B_x": _B_in["x"],
        "B_w1": _B_in["w1"],
        "B_b1": _B_in["b1"],
        "B_w2": _B_in["w2"],
        "B_b2": _B_in["b2"],
    }

def reference(A_x, A_k_cache, A_v_cache, A_wq, A_wo, B_x, B_w1, B_b1, B_w2, B_b2):
    def _A_ref(x, k_cache, v_cache, wq, wo):
        B, Sq, D = x.shape
        Hq, Dh = 32, 128
        Hkv = k_cache.shape[1]
        rep = Hq // Hkv
        q = (lambda x, *d: x.permute(*d))((x @ wq).reshape(B, Sq, Hq, Dh), 0, 2, 1, 3)
        k = (lambda x, n, axis: torch.repeat_interleave(x, n, dim=axis))(k_cache, rep, axis=1)
        v = (lambda x, n, axis: torch.repeat_interleave(x, n, dim=axis))(v_cache, rep, axis=1)
        scores = torch.einsum("bhqd,bhkd->bhqk", q, k) * (Dh ** -0.5)
        p = _softmax(scores, axis=-1)
        o = torch.einsum("bhqk,bhkd->bhqd", p, v)
        return (lambda x, *d: x.permute(*d))(o, 0, 2, 1, 3).reshape(B, Sq, Hq * Dh) @ wo

    def _B_ref(x, w1, b1, w2, b2):
        B, S, D = x.shape
        h = _layernorm(x, axis=-1)
        u = torch.einsum("bsd,sf->bdf", h, w1) + b1
        u = _gelu(u)
        y = torch.einsum("bdf,fs->bds", u, w2) + b2
        return (lambda x, *d: x.permute(*d))(y, 0, 2, 1)

    x = A_x
    h = x + _A_ref(_layernorm(x, axis=-1), A_k_cache, A_v_cache, A_wq, A_wo)
    h2 = h + _B_ref(_layernorm(h, axis=-1), B_w1, B_b1, B_w2, B_b2)
    return h2
```

```python
import re

TRANS = ("v_exp_f32", "v_log_f32", "v_rcp_f32", "v_rsq_f32", "v_sqrt_f32", "v_sin_f32", "v_cos_f32")


def split_ops(s):
    out, depth, cur = [], 0, ""
    for ch in s:
        if ch == "[":
            depth += 1
        elif ch == "]":
            depth -= 1
        if ch == "," and depth == 0:
            out.append(cur.strip()); cur = ""
        else:
            cur += ch
    if cur.strip():
        out.append(cur.strip())
    return out


def regs_of(op):
    op = op.strip()
    tok = op.split()[0] if op else ""
    m = re.fullmatch(r"([vas])(\d+)", tok)
    if m:
        return {(m.group(1), int(m.group(2)))}
    m = re.fullmatch(r"([vas])\[(\d+):(\d+)\]", tok)
    if m:
        return {(m.group(1), i) for i in range(int(m.group(2)), int(m.group(3)) + 1)}
    if tok in ("vcc", "vcc_lo", "vcc_hi"):
        return {("s", "vcc")}
    if tok in ("exec", "exec_lo", "exec_hi"):
        return {("s", "exec")}
    if tok == "m0":
        return {("s", "m0")}
    return set()


class Ins:
    def __init__(self, text):
        self.text = text
        t = text.split(";")[0].strip()
        self.is_label = t.endswith(":")
        self.empty = (t == "") or t.startswith(".")
        if self.is_label or self.empty:
            self.mn = ""
            return
        parts = t.split(None, 1)
        self.mn = parts[0]
        rest = parts[1] if len(parts) > 1 else ""
        self.ops = split_ops(rest)
        self.rest = rest
        mn = self.mn
        self.mfma = mn.startswith("v_mfma")
        self.valu = mn.startswith("v_") and not self.mfma
        self.trans = any(mn.startswith(x) for x in TRANS)
        self.dpp = ("row_" in rest) or ("quad_perm" in rest) or ("wave_" in rest) or mn.endswith("_dpp")
        self.perml = mn.startswith("v_permlane")
        self.rdlane = mn.startswith("v_readlane") or mn.startswith("v_readfirstlane")
        self.vmem = mn.startswith("buffer_") or mn.startswith("global_")
        self.ds = mn.startswith("ds_")
        self.salu = mn.startswith("s_")
        self.branch = mn.startswith("s_cbranch") or mn == "s_branch"
        self.dot = mn.startswith("v_dot")
        self.lds_dma = self.vmem and re.search(r"\blds\b", rest) is not None
        R = [regs_of(o) for o in self.ops]
        self.w, self.r = set(), set()
        if self.mfma:
            self.w = R[0]
            self.a_b = R[1] | R[2]
            self.c = R[3] if len(R) > 3 else set()
            self.r = self.a_b | self.c
        elif self.valu:
            if self.perml and "swap" in mn:
                self.w = R[0] | R[1]; self.r = R[0] | R[1]
            elif mn.startswith("v_cmp"):
                self.w = R[0]
                for x in R[1:]: self.r |= x
            elif "_co_" in mn:
                self.w = R[0] | R[1]
                for x in R[2:]: self.r |= x
            else:
                self.w = R[0]
                for x in R[1:]: self.r |= x
                if mn.startswith("v_fmac") or mn.startswith("v_dot2c") or mn.startswith("v_mac") or self.dpp or mn.startswith("v_writelane"):
                    self.r |= R[0]
                if mn.startswith("v_cndmask") and len(R) == 3:
                    self.r |= {("s", "vcc")}
        elif self.vmem:
            is_store = "store" in mn
            is_atomic = "atomic" in mn
            if self.lds_dma:
                for x in R: self.r |= x
                self.r |= {("s", "m0")}
            elif is_store or is_atomic:
                for x in R: self.r |= x
                self.store_data = R[0]
            else:
                self.w = R[0]
                for x in R[1:]: self.r |= x
        elif self.ds:
            if mn.startswith("ds_read") or "_rtn" in mn or "permute" in mn or "swizzle" in mn:
                self.w = R[0]
                for x in R[1:]: self.r |= x
            else:
                for x in R: self.r |= x
        elif self.salu:
            if mn.startswith("s_cmp") or mn.startswith("s_waitcnt") or self.branch or mn in ("s_nop", "s_barrier", "s_endpgm", "s_setprio", "s_sleep"):
                for x in R: self.r |= x
            else:
                if R: self.w = R[0]
                for x in R[1:]: self.r |= x
                if "saveexec" in mn:
                    self.w |= {("s", "exec")}


def fix_hazards(lines):
    out = []
    T = 0
    wv = {}
    wtr = {}
    wm = {}
    ws = {}
    wdot = {}
    cread = {}
    sdata = {}
    m0t = [-100]
    nins = 0

    def pad(need):
        nonlocal T
        n = need - T
        while n > 0:
            k = min(n, 16)
            out.append(f"  s_nop {k-1}")
            T += k; n -= k

    for raw in lines:
        ins = Ins(raw)
        if ins.is_label or ins.empty:
            out.append(raw)
            continue
        need = T

        def req(tbl, regs, ws_, key=lambda x: x):
            nonlocal need
            for r in regs:
                if r in tbl:
                    need = max(need, key(tbl[r]) + 1 + ws_)
        vr = lambda S: {r for r in S if r[0] in "va"}
        sr = lambda S: {r for r in S if r[0] == "s"}
        if ins.valu:
            if ins.dpp or ins.perml:
                req(wv, vr(ins.r), 2); req(wtr, vr(ins.r), 2)
            if ins.rdlane:
                req(wv, vr(ins.r), 1); req(wtr, vr(ins.r), 1)
                if ins.mn.startswith("v_readlane"):
                    req(ws, sr(ins.r), 4)
            if ins.mn.startswith("v_writelane"):
                req(ws, sr(ins.r), 4)
            req(ws, sr(ins.r), 2)
            if not ins.trans:
                req(wtr, vr(ins.r), 1)
            else:
                pass
            req(wm, vr(ins.r) | vr(ins.w), 8, key=lambda x: x[0])
            req(cread, vr(ins.w), 3)
            req(sdata, vr(ins.w), 2)
            if ins.dot:
                pass
            req(wdot, vr(ins.r) | vr(ins.w), 3)
        elif ins.mfma:
            req(wv, vr(ins.r), 2); req(wtr, vr(ins.r), 2); req(wdot, vr(ins.r), 3)
            req(wm, vr(ins.a_b), 8, key=lambda x: x[0])
            for r in vr(ins.c):
                if r in wm:
                    t, D = wm[r]
                    if D != ins.c:
                        need = max(need, t + 1 + 6)
            for r in vr(ins.w):
                if r in wm and r not in ins.c:
                    need = max(need, wm[r][0] + 1 + 6)
        elif ins.vmem or ins.ds:
            req(wm, vr(ins.r) | vr(ins.w), 8, key=lambda x: x[0])
            req(wtr, vr(ins.r), 1)
            if ins.vmem:
                req(ws, sr(ins.r), 5)
                if ins.lds_dma:
                    need = max(need, m0t[0] + 1 + 1)
            req(sdata, vr(ins.w), 1)
        elif ins.salu:
            if ins.branch or ins.mn == "s_endpgm":
                for tbl, w_, key in ((wv, 2, None), (wtr, 2, None), (ws, 5, None), (wdot, 3, None), (cread, 3, None), (sdata, 2, None)):
                    for r, t in tbl.items():
                        need = max(need, t + w_)
                for r, (t, D) in wm.items():
                    need = max(need, t + 8)
                need = max(need, m0t[0] + 1)
        pad(need)
        out.append(raw)
        nins += 1
        now = T
        if ins.mn == "s_nop":
            T += int(ins.ops[0]) + 1
        else:
            T += 1
        if ins.valu:
            for r in ins.w:
                if r[0] in "va":
                    wv[r] = now
                    wm.pop(r, None)
                    if ins.trans: wtr[r] = now
                    else: wtr.pop(r, None)
                    if ins.dot: wdot[r] = now
                    else: wdot.pop(r, None)
                else:
                    ws[r] = now
        elif ins.mfma:
            D = frozenset(ins.w)
            for r in ins.w:
                wm[r] = (now, set(D)); wv.pop(r, None); wtr.pop(r, None)
            for r in ins.c:
                cread[r] = now
        elif ins.vmem:
            if hasattr(ins, "store_data") and len(ins.store_data) >= 3:
                for r in ins.store_data: sdata[r] = now
        elif ins.salu:
            for r in ins.w:
                if r == ("s", "m0"): m0t[0] = now
                ws.pop(r, None)
        if nins % 64 == 0:
            for tbl in (wv, wtr, ws, wdot, cread, sdata):
                for r in [r for r, t in tbl.items() if t < T - 20]: del tbl[r]
            for r in [r for r, (t, D) in wm.items() if t < T - 20]: del wm[r]
    return out


class Asm:
    def __init__(self):
        self.L = []
        self.vmq = []
        self.nlab = 0

    def I(self, s):
        for ln in s.strip("\n").split("\n"):
            ln = ln.strip()
            if ln:
                self.L.append(ln if ln.endswith(":") else "  " + ln)

    def C(self, s):
        self.L.append("  ; " + s)

    def VM(self, s, tag=None):
        self.I(s)
        self.vmq.append(tag)

    def vm_pending_after(self, tag):
        idx = max(i for i, t in enumerate(self.vmq) if t == tag)
        return len(self.vmq) - 1 - idx

    def waitvm(self, tag, extra=""):
        n = self.vm_pending_after(tag)
        assert n <= 63, (tag, n)
        self.I(f"s_waitcnt vmcnt({n}){extra}")

    def drain(self):
        self.I("s_waitcnt vmcnt(0)")

    def label(self, base):
        self.nlab += 1
        return f"L_{base}_{self.nlab}"

    def text(self):
        return "\n".join(fix_hazards(self.L)) + "\n"
```

```python
import sys, math, struct
sys.path.insert(0, "work")
from asmlib import Asm

NAME = "sequential_preLN__gqa_block_cached__mixer_token_mlp__decode_kernel"

def f2u(x):
    return struct.unpack("<I", struct.pack("<f", x))[0]

QP0 = 0x000000
OP0 = 0x100000
ML0 = 0x200000
OB0 = 0x210000
AP0 = 0x220000
TB0 = 0x230000
ST0 = 0xF000000
OOB = 0x80000000

RING = 32768
MISC = 131072
QRED = MISC + 0
QBF  = MISC + 2048
MX   = MISC + 4096
LS   = MISC + 4352
TRED = MISC + 4608
OST  = MISC + 5120
STAT = MISC + 9216
FBN  = MISC + 9344
FBP  = MISC + 9360
FBL  = MISC + 9472
ORED = MISC + 14336
OSTR = 576
TBL  = 0
FLIST = 16384
LDS_BYTES = 163840

sK, sV, sWQ, sWO, sX, sWS, sDBG, sOUT, sW1, sB1, sW2, sB2 = 4, 8, 12, 16, 20, 24, 28, 32, 36, 40, 44, 48
sW, sPAIR, sSPLIT, sKV0, sRING, sWQ0, sWO0 = 52, 53, 54, 55, 56, 57, 58
sA, sB, sC, sD, sCNT, sS = 59, 60, 61, 62, 63, 96
sE0, sE1 = 98, 99
STAMP0 = 64

def srd(b): return f"s[{b}:{b+3}]"

vTid, vLane = 0, 1
vKD = [2, 3, 4, 5]; vVD = [6, 7]; vWD = 8; vWD2 = 9
vKR = [10, 11, 12, 13]; vVR = list(range(14, 22)); vWR = [22, 23, 24, 25]
vQPa, vOPa, vMLa, vOBa, vAPa, vTBa = 26, 27, 28, 29, 30, 31
vN, vG, vOW, vOR, vK1, vM, vL, vB2 = 32, 33, 34, 35, 36, 37, 38, 39
W1 = list(range(40, 54)); B1 = list(range(54, 68)); W2 = list(range(68, 82))
vQG, vQB = 82, 83
TACC = list(range(84, 100))
S = list(range(100, 164))
O = list(range(164, 196))
T = list(range(196, 256))

def vr(a, n): return f"v[{a}:{a+n-1}]"
def ar(a, n): return f"a[{a}:{a+n-1}]"

LOG2E = 1.4426950408889634
SCALE = 0.08838834764831845

class Cfg:
    DK = 5
    DV = 6
    chk_at = 2
    qg_at = 8
    quse_at = 13
    tab_k = [3, 4, 5, 6, 7, 9, 10, 11]
    tab_v = [1, 2, 3, 4, 5, 6, 7, 8]
    b4_at = 10
    limit = 20000
    profile = False
    stop_after = None


def gen(cfg):
    A = Asm()
    I, VM = A.I, A.VM
    nstamp = [0]
    stampnames = []

    def stamp(name):
        if not cfg.profile:
            return
        k = nstamp[0]
        assert k < 16
        nstamp[0] += 1
        stampnames.append(name)
        I(f"s_memrealtime s[{STAMP0+2*k}:{STAMP0+2*k+1}]")

    def write_stamps():
        if not cfg.profile:
            return
        I("s_waitcnt lgkmcnt(0)")
        I(f"v_mov_b32 v{T[0]}, 0")
        for k in range(16):
            I(f"v_writelane_b32 v{T[0]}, s{STAMP0+2*k}, {k}")
        I(f"s_getreg_b32 s{sA}, hwreg(HW_REG_XCC_ID)")
        I(f"v_writelane_b32 v{T[0]}, s{sA}, 16")
        I(f"s_lshl_b32 s{sA}, s2, 2")
        I(f"s_add_u32 s{sA}, s{sA}, s{sW}")
        I(f"s_lshl_b32 s{sA}, s{sA}, 7")
        I(f"s_add_u32 s{sA}, s{sA}, {ST0}")
        I(f"v_lshlrev_b32 v{T[1]}, 2, v{vLane}")
        I(f"v_cmp_gt_u32 vcc, 32, v{vLane}")
        I(f"v_mov_b32 v{T[2]}, {OOB}")
        I(f"v_cndmask_b32 v{T[1]}, v{T[2]}, v{T[1]}, vcc")
        I(f"buffer_store_dword v{T[0]}, v{T[1]}, {srd(sWS)}, s{sA} offen")

    def rnd(d, s_=None):
        I(f"v_cvt_pk_bf16_f32 v{d}, 0, v{d if s_ is None else s_}")

    def allreduce(op, regs, tmps, lo_steps=(8, 4, 2, 1), rows=True):
        for st in lo_steps:
            for r in regs:
                I(f"v_{op}_f32_dpp v{r}, v{r}, v{r} row_ror:{st} row_mask:0xf bank_mask:0xf")
        if rows:
            for sw in ("16", "32"):
                for r, t in zip(regs, tmps):
                    I(f"v_mov_b32 v{t}, v{r}")
                for r, t in zip(regs, tmps):
                    I(f"v_permlane{sw}_swap_b32 v{r}, v{t}")
                for r, t in zip(regs, tmps):
                    I(f"v_{op}_f32 v{r}, v{r}, v{t}")

    def any_sentinel(regs, t):
        regs = list(regs)
        if len(regs) == 1:
            I(f"v_mov_b32 v{t}, v{regs[0]}")
            return
        if len(regs) == 2:
            I(f"v_max_u32 v{t}, v{regs[0]}, v{regs[1]}")
            return
        I(f"v_max3_u32 v{t}, v{regs[0]}, v{regs[1]}, v{regs[2]}")
        rest = regs[3:]
        while len(rest) >= 2:
            I(f"v_max3_u32 v{t}, v{t}, v{rest[0]}, v{rest[1]}")
            rest = rest[2:]
        if rest:
            I(f"v_max_u32 v{t}, v{t}, v{rest[0]}")

    def poll(loads, regs, t, base):
        lp, dn = A.label(base), A.label(base + "_done")
        I(f"s_mov_b32 s{sCNT}, {cfg.limit}")
        I(f"{lp}:")
        for ld in loads:
            I(ld)
        I("s_waitcnt vmcnt(0)")
        any_sentinel(regs, t)
        I(f"v_cmp_eq_u32 vcc, -1, v{t}")
        I("s_mov_b64 exec, vcc")
        I(f"s_cbranch_execz {dn}")
        I(f"s_sub_u32 s{sCNT}, s{sCNT}, 1")
        I(f"s_cmp_lg_u32 s{sCNT}, 0")
        I(f"s_cbranch_scc1 {lp}")
        I(f"{dn}:")
        I("s_mov_b64 exec, -1")

    items = [("WQ", 0), ("WQ", 1)] + [("K", t) for t in range(16)] + [("V", t) for t in range(16)] + [("WO", t) for t in range(8)]
    issued = [0]
    consumed = [0]

    def issue_item(i):
        kind, t = items[i]
        slot = i % 8
        assert i - 8 < consumed[0], ("slot busy", i, consumed[0])
        I(f"s_add_u32 m0, s{sRING}, {slot*4096}")
        if kind in ("K", "V"):
            I(f"s_add_u32 s{sA}, s{sKV0}, {t*524288}")
            for q in range(4):
                va = vKD[q] if kind == "K" else vVD[q & 1]
                VM(f"buffer_load_dwordx4 v{va}, {srd(sK if kind == 'K' else sV)}, s{sA} offen offset:{q*1024} nt lds", tag=("it", i))
        else:
            stride = 8192 if kind == "WQ" else 2048
            base = sWQ0 if kind == "WQ" else sWO0
            va = vWD if kind == "WQ" else vWD2
            for q in range(4):
                row = t * 32 + q * 8
                assert row * stride - q * 1024 >= 0
                I(f"s_add_u32 s{sA}, s{base}, {row*stride - q*1024}")
                VM(f"buffer_load_dwordx4 v{va}, {srd(sWQ if kind == 'WQ' else sWO)}, s{sA} offen offset:{q*1024} nt lds", tag=("it", i))

    def issue_upto(i):
        while issued[0] <= i and issued[0] < len(items):
            issue_item(issued[0])
            issued[0] += 1

    def slot_off(i): return (i % 8) * 4096

    K1 = -2.0 * math.sqrt(2.0 / math.pi) * LOG2E
    K2 = K1 * 0.044715

    def mlp_eval(acc, sreg, first=True):
        U = T[0:14]; Z = T[14:28]
        for i in range(14): I(f"v_mul_f32 v{U[i]}, s{sreg}, v{W1[i]}")
        for i in range(14): rnd(U[i])
        for i in range(14): I(f"v_add_f32 v{U[i]}, v{U[i]}, v{B1[i]}")
        for i in range(14): rnd(U[i])
        for i in range(14): I(f"v_mul_f32 v{Z[i]}, v{U[i]}, v{U[i]}")
        for i in range(14): I(f"v_fmamk_f32 v{Z[i]}, v{Z[i]}, 0x{f2u(K2):08x}, v{vK1}")
        for i in range(14): I(f"v_mul_f32 v{Z[i]}, v{Z[i]}, v{U[i]}")
        for i in range(14): I(f"v_exp_f32 v{Z[i]}, v{Z[i]}")
        for i in range(14): I(f"v_add_f32 v{Z[i]}, 1.0, v{Z[i]}")
        for i in range(14): I(f"v_rcp_f32 v{Z[i]}, v{Z[i]}")
        for i in range(14): I(f"v_mul_f32 v{Z[i]}, v{Z[i]}, v{U[i]}")
        for i in range(14): rnd(Z[i])
        for i in range(14):
            if i == 0 and first:
                I(f"v_mul_f32 v{acc}, v{Z[0]}, v{W2[0]}")
            else:
                I(f"v_fmac_f32 v{acc}, v{Z[i]}, v{W2[i]}")

    def table_entry(e):
        I(f"s_lshl_b32 s{sA}, s2, 4")
        I(f"s_add_u32 s{sA}, s{sA}, {e}")
        I(f"s_lshr_b32 s{sB}, s{sA}, 11")
        I(f"s_lshl_b32 s{sB}, s{sB}, 31")
        I(f"s_and_b32 s{sA}, s{sA}, 2047")
        I(f"s_add_u32 s{sA}, s{sA}, {114 << 7}")
        I(f"s_lshl_b32 s{sA}, s{sA}, 16")
        I(f"s_or_b32 s{sS}, s{sA}, s{sB}")
        mlp_eval(TACC[e], sS)

    I("s_cmp_ge_u32 s2, 256")
    I("s_cbranch_scc1 L_end")
    I("s_load_dwordx16 s[64:79], s[0:1], 0")
    I("s_load_dwordx8 s[80:87], s[0:1], 64")
    I("s_load_dwordx2 s[88:89], s[0:1], 96")
    t0, t1, t2, t3, t4, t5 = T[0:6]
    I(f"v_lshrrev_b32 v{t0}, 6, v0")
    I(f"v_and_b32 v{vLane}, 63, v0")
    I(f"v_readfirstlane_b32 s{sW}, v{t0}")
    I(f"v_and_b32 v{vN}, 15, v{vLane}")
    I(f"v_lshrrev_b32 v{vG}, 4, v{vLane}")
    for b, n in ((sK, 1 << 26), (sX, 4096), (sWQ, 1 << 23), (sWS, 1 << 28), (sV, 1 << 26), (sWO, 1 << 23), (sDBG, 256), (sOUT, 4096), (sW1, 7168), (sB1, 7168), (sW2, 7168), (sB2, 2)):
        I(f"s_mov_b32 s{b+2}, {n}")
        I(f"s_mov_b32 s{b+3}, 0x20000")
    I(f"s_and_b32 s{sPAIR}, s2, 7")
    I(f"s_lshr_b32 s{sSPLIT}, s2, 3")
    I(f"s_lshl_b32 s{sA}, s{sSPLIT}, 2")
    I(f"s_add_u32 s{sA}, s{sA}, s{sW}")
    I(f"s_lshl_b32 s{sA}, s{sA}, 12")
    I(f"s_lshl_b32 s{sKV0}, s{sPAIR}, 23")
    I(f"s_add_u32 s{sKV0}, s{sKV0}, s{sA}")
    I(f"s_lshl_b32 s{sRING}, s{sW}, 15")
    I(f"s_lshr_b32 s{sA}, s2, 6")
    I(f"s_lshl_b32 s{sA}, s{sA}, 2")
    I(f"s_add_u32 s{sA}, s{sA}, s{sW}")
    I(f"s_lshl_b32 s{sB}, s{sA}, 6")
    I(f"s_lshl_b32 s{sWQ0}, s{sB}, 13")
    I(f"s_and_b32 s{sC}, s2, 63")
    I(f"s_lshl_b32 s{sC}, s{sC}, 7")
    I(f"s_add_u32 s{sWQ0}, s{sWQ0}, s{sC}")
    vXA, vXF = T[6], T[7]
    I(f"v_lshlrev_b32 v{vXA}, 5, v{vLane}")
    I(f"v_and_b32 v{t0}, 1, v{vN}")
    I(f"v_lshlrev_b32 v{t0}, 11, v{t0}")
    I(f"v_lshl_add_u32 v{t0}, v{vG}, 3, v{t0}")
    I(f"s_lshl_b32 s{sB}, s{sB}, 1")
    I(f"v_add_u32 v{vXF}, s{sB}, v{t0}")
    I(f"v_lshrrev_b32 v{t0}, 3, v{vLane}")
    I(f"v_bfe_u32 v{t1}, v{vLane}, 1, 2")
    I(f"v_bfe_u32 v{t2}, v{vLane}, 4, 2")
    I(f"v_xor_b32 v{t1}, v{t1}, v{t2}")
    I(f"v_lshlrev_b32 v{t1}, 5, v{t1}")
    I(f"v_and_b32 v{t2}, 1, v{vLane}")
    I(f"v_lshl_or_b32 v{t1}, v{t2}, 4, v{t1}")
    I(f"v_lshl_or_b32 v{vWD}, v{t0}, 13, v{t1}")
    I(f"v_lshl_or_b32 v{vWD2}, v{t0}, 11, v{t1}")
    I(f"v_xor_b32 v{t0}, v{vN}, v{vG}")
    I(f"v_lshlrev_b32 v{t1}, 8, v{vG}")
    I(f"v_lshlrev_b32 v{t2}, 8, v{vN}")
    I(f"v_add_u32 v{t2}, s{sRING}, v{t2}")
    for i in range(4):
        I(f"v_xor_b32 v{t3}, {4*i}, v{t0}")
        I(f"v_lshl_or_b32 v{vKD[i]}, v{t3}, 4, v{t1}")
        I(f"v_lshl_add_u32 v{vKR[i]}, v{t3}, 4, v{t2}")
    I("s_waitcnt lgkmcnt(0)")
    for b, p in ((sX, 64), (sK, 66), (sV, 68), (sWQ, 70), (sWO, 72), (sW1, 76), (sB1, 78), (sW2, 80), (sB2, 82), (sOUT, 84), (sDBG, 86), (sWS, 88)):
        I(f"s_mov_b32 s{b}, s{p}")
        I(f"s_mov_b32 s{b+1}, s{p+1}")
    if cfg.profile:
        for k in range(16):
            I(f"s_mov_b32 s{STAMP0+2*k}, 0")
    stamp("start")
    XR = S[0:16]; XF = S[16:24]
    VM(f"buffer_load_dwordx4 {vr(XR[0],4)}, v{vXA}, {srd(sX)}, 0 offen", "x")
    VM(f"buffer_load_dwordx4 {vr(XR[4],4)}, v{vXA}, {srd(sX)}, 0 offen offset:16", "x")
    VM(f"buffer_load_dwordx4 {vr(XR[8],4)}, v{vXA}, {srd(sX)}, 0 offen offset:2048", "x")
    VM(f"buffer_load_dwordx4 {vr(XR[12],4)}, v{vXA}, {srd(sX)}, 0 offen offset:2064", "x")
    for kk in range(2):
        for h in range(2):
            VM(f"buffer_load_dwordx2 {vr(XF[4*kk+2*h],2)}, v{vXF}, {srd(sX)}, 0 offen offset:{64*kk+32*h}", "x")
    issue_upto(7)
    t0, t1, t2, t3, t4, t5 = T[0:6]
    I(f"v_lshrrev_b32 v{t0}, 1, v{vN}")
    I(f"v_and_b32 v{t2}, 1, v{vN}")
    I(f"v_lshlrev_b32 v{t2}, 4, v{t2}")
    I(f"v_lshl_or_b32 v{t2}, v{vG}, 8, v{t2}")
    for par in range(2):
        I(f"v_xor_b32 v{t1}, v{t0}, v{vG}")
        if par: I(f"v_xor_b32 v{t1}, 4, v{t1}")
        I(f"v_lshl_add_u32 v{vVD[par]}, v{t1}, 5, v{t2}")
    I(f"v_lshrrev_b32 v{t0}, 2, v{vN}")
    I(f"v_lshl_add_u32 v{t0}, v{vG}, 2, v{t0}")
    I(f"v_and_b32 v{t1}, 3, v{vN}")
    I(f"v_lshlrev_b32 v{t1}, 3, v{t1}")
    I(f"v_add_u32 v{t1}, s{sRING}, v{t1}")
    I(f"v_lshl_add_u32 v{t2}, v{t0}, 8, v{t1}")
    I(f"v_and_b32 v{t3}, 7, v{t0}")
    for mt in range(8):
        I(f"v_xor_b32 v{t4}, {mt}, v{t3}")
        I(f"v_lshl_add_u32 v{vVR[mt]}, v{t4}, 5, v{t2}")
    I(f"v_lshl_add_u32 v{t2}, v{t0}, 7, v{t1}")
    I(f"v_bfe_u32 v{t3}, v{t0}, 1, 2")
    for mt in range(4):
        I(f"v_xor_b32 v{t4}, {mt}, v{t3}")
        I(f"v_lshl_add_u32 v{vWR[mt]}, v{t4}, 5, v{t2}")
    vOOB = T[8]
    I(f"v_mov_b32 v{vOOB}, {OOB}")
    I(f"s_bfe_u32 s{sA}, s2, 0x20004")
    I(f"s_lshl_b32 s{sA}, s{sA}, 1")
    I(f"s_lshr_b32 s{sB}, s{sW}, 1")
    I(f"s_add_u32 s{sA}, s{sA}, s{sB}")
    I(f"s_lshl_b32 s{sA}, s{sA}, 2")
    I(f"s_lshr_b32 s{sC}, s2, 6")
    I(f"s_add_u32 s{sA}, s{sA}, s{sC}")
    I(f"s_lshl_b32 s{sA}, s{sA}, 12")
    I(f"s_and_b32 s{sC}, s2, 15")
    I(f"s_lshl_b32 s{sC}, s{sC}, 8")
    I(f"s_add_u32 s{sA}, s{sA}, s{sC}")
    I(f"s_and_b32 s{sC}, s{sW}, 1")
    I(f"s_lshl_b32 s{sC}, s{sC}, 7")
    I(f"s_add_u32 s{sA}, s{sA}, s{sC}")
    I(f"s_add_u32 s{sA}, s{sA}, {QP0}")
    I(f"v_lshlrev_b32 v{t0}, 4, v{vLane}")
    I(f"v_cmp_gt_u32 vcc, 8, v{vLane}")
    I(f"v_add_u32 v{t1}, s{sA}, v{t0}")
    I(f"v_cndmask_b32 v{vQPa}, v{vOOB}, v{t1}, vcc")
    I(f"s_lshl_b32 s{sA}, s{sB}, 2")
    I(f"s_and_b32 s{sD}, s2, 3")
    I(f"s_add_u32 s{sA}, s{sA}, s{sD}")
    I(f"s_lshl_b32 s{sA}, s{sA}, 12")
    I(f"s_add_u32 s{sA}, s{sA}, s{sC}")
    I(f"s_lshr_b32 s{sC}, s2, 2")
    I(f"s_lshl_b32 s{sC}, s{sC}, 8")
    I(f"s_add_u32 s{sA}, s{sA}, s{sC}")
    I(f"s_add_u32 s{sA}, s{sA}, {AP0}")
    I(f"s_cmp_lt_u32 s2, 64")
    I(f"s_cselect_b32 s{sA}, s{sA}, {OOB}")
    I(f"v_add_u32 v{t1}, s{sA}, v{t0}")
    I(f"v_cndmask_b32 v{vAPa}, v{vOOB}, v{t1}, vcc")
    I(f"s_lshl_b32 s{sA}, s{sD}, 2")
    I(f"s_add_u32 s{sA}, s{sA}, s{sW}")
    I(f"s_lshl_b32 s{sWO0}, s{sA}, 19")
    I(f"s_lshr_b32 s{sC}, s2, 2")
    I(f"s_and_b32 s{sC}, s{sC}, 15")
    I(f"s_lshl_b32 s{sC}, s{sC}, 7")
    I(f"s_add_u32 s{sWO0}, s{sWO0}, s{sC}")
    I(f"s_lshl_b32 s{sA}, s{sPAIR}, 17")
    I(f"s_lshl_b32 s{sB}, s{sSPLIT}, 6")
    I(f"s_add_u32 s{sA}, s{sA}, s{sB}")
    I(f"s_add_u32 s{sA}, s{sA}, {OP0}")
    I(f"v_lshrrev_b32 v{t1}, 2, v{vTid}")
    I(f"v_lshlrev_b32 v{t1}, 11, v{t1}")
    I(f"v_and_b32 v{t2}, 3, v{vTid}")
    I(f"v_lshl_or_b32 v{t1}, v{t2}, 4, v{t1}")
    I(f"v_add_u32 v{vOPa}, s{sA}, v{t1}")
    I(f"s_lshl_b32 s{sA}, s{sPAIR}, 11")
    I(f"s_lshl_b32 s{sB}, s{sSPLIT}, 3")
    I(f"s_add_u32 s{sA}, s{sA}, s{sB}")
    I(f"s_add_u32 s{sA}, s{sA}, {ML0}")
    I(f"s_cmp_eq_u32 s{sW}, 0")
    I(f"s_cselect_b32 s{sA}, s{sA}, {OOB}")
    I(f"v_lshlrev_b32 v{t1}, 8, v{vLane}")
    I(f"v_add_u32 v{t1}, s{sA}, v{t1}")
    I(f"v_cndmask_b32 v{vMLa}, v{vOOB}, v{t1}, vcc")
    I(f"s_lshl_b32 s{sA}, s2, 6")
    I(f"s_add_u32 s{sA}, s{sA}, {TB0}")
    I(f"s_cmp_eq_u32 s{sW}, 0")
    I(f"s_cselect_b32 s{sA}, s{sA}, {OOB}")
    I(f"v_cmp_gt_u32 vcc, 16, v{vLane}")
    I(f"v_lshl_add_u32 v{t1}, v{vLane}, 2, s{sA}")
    I(f"v_cndmask_b32 v{vTBa}, v{vOOB}, v{t1}, vcc")
    I(f"s_lshr_b32 s{sA}, s{sPAIR}, 2")
    I(f"s_lshl_b32 s{sA}, s{sA}, 13")
    I(f"s_and_b32 s{sB}, s{sPAIR}, 3")
    I(f"s_lshl_b32 s{sB}, s{sB}, 11")
    I(f"s_add_u32 s{sA}, s{sA}, s{sB}")
    I(f"s_and_b32 s{sB}, s{sSPLIT}, 15")
    I(f"s_lshl_b32 s{sB}, s{sB}, 7")
    I(f"s_add_u32 s{sA}, s{sA}, s{sB}")
    I(f"s_lshl_b32 s{sB}, s{sW}, 5")
    I(f"s_add_u32 s{sA}, s{sA}, s{sB}")
    I(f"s_add_u32 s{sA}, s{sA}, {OB0}")
    I(f"s_cmp_ge_u32 s{sSPLIT}, 16")
    I(f"s_cselect_b32 s{sA}, s{sA}, {OOB}")
    I(f"v_and_b32 v{t1}, 1, v{vLane}")
    I(f"v_lshlrev_b32 v{t1}, 4, v{t1}")
    I(f"v_lshrrev_b32 v{t2}, 5, v{vLane}")
    I(f"v_lshl_or_b32 v{t1}, v{t2}, 3, v{t1}")
    I(f"v_bfe_u32 v{t2}, v{vLane}, 4, 1")
    I(f"v_lshl_or_b32 v{t1}, v{t2}, 2, v{t1}")
    I(f"v_add_u32 v{t1}, s{sA}, v{t1}")
    I(f"v_and_b32 v{t2}, 14, v{vLane}")
    I(f"v_cmp_eq_u32 vcc, 0, v{t2}")
    I(f"v_cndmask_b32 v{vOBa}, v{vOOB}, v{t1}, vcc")
    M1 = T[12:16]
    for r in M1: I(f"v_mov_b32 v{r}, -1")
    VM(f"buffer_store_dwordx4 {vr(M1[0],4)}, v{vOPa}, {srd(sWS)}, 0 offen sc1", "clr")
    VM(f"buffer_store_dwordx4 {vr(M1[0],4)}, v{vQPa}, {srd(sWS)}, 0 offen sc1", "clr")
    VM(f"buffer_store_dwordx4 {vr(M1[0],4)}, v{vAPa}, {srd(sWS)}, 0 offen sc1", "clr")
    VM(f"buffer_store_dwordx2 {vr(M1[0],2)}, v{vMLa}, {srd(sWS)}, 0 offen sc1", "clr")
    VM(f"buffer_store_dword v{M1[0]}, v{vOBa}, {srd(sWS)}, 0 offen sc1", "clr")
    VM(f"buffer_store_dword v{M1[0]}, v{vTBa}, {srd(sWS)}, 0 offen sc1", "clr")
    RW = [S[24:32][0], S[32], S[40]]
    I(f"s_mul_i32 s{sA}, s{sW}, 1792")
    I(f"v_lshlrev_b32 v{t0}, 4, v{vLane}")
    I(f"v_lshlrev_b32 v{t1}, 3, v{vLane}")
    I(f"v_lshlrev_b32 v{t2}, 2, v{vLane}")
    for r0, sr_ in zip(RW, (sW1, sB1, sW2)):
        VM(f"buffer_load_dwordx4 {vr(r0,4)}, v{t0}, {srd(sr_)}, s{sA} offen", "w")
        VM(f"buffer_load_dwordx2 {vr(r0+4,2)}, v{t1}, {srd(sr_)}, s{sA} offen offset:1024", "w")
        VM(f"buffer_load_dword v{r0+6}, v{t2}, {srd(sr_)}, s{sA} offen offset:1536", "w")
    I(f"v_mov_b32 v{t3}, 0")
    VM(f"buffer_load_ushort v{vB2}, v{t3}, {srd(sB2)}, 0 offen", "w")
    I(f"v_mov_b32 v{vK1}, 0x{f2u(K1):08x}")
    I(f"v_and_b32 v{t0}, 7, v{vN}")
    I(f"v_mul_u32_u24 v{t0}, {OSTR}, v{t0}")
    I(f"v_lshl_add_u32 v{t0}, v{vG}, 4, v{t0}")
    I(f"s_mul_i32 s{sA}, s{sW}, {8*OSTR}")
    I(f"s_add_u32 s{sA}, s{sA}, {ORED}")
    I(f"v_add_u32 v{vOW}, s{sA}, v{t0}")
    I(f"v_lshrrev_b32 v{t0}, 5, v{vTid}")
    I(f"v_mul_u32_u24 v{t0}, {OSTR}, v{t0}")
    I(f"v_and_b32 v{t1}, 31, v{vTid}")
    I(f"v_lshl_add_u32 v{t0}, v{t1}, 4, v{t0}")
    I(f"v_add_u32 v{vOR}, {ORED}, v{t0}")
    I(f"s_and_b32 s{sA}, s{sPAIR}, 3")
    I(f"s_lshl_b32 s{sA}, s{sA}, 1")
    I(f"s_lshr_b32 s{sB}, s{sPAIR}, 2")
    I(f"s_add_u32 s{sA}, s{sA}, s{sB}")
    I(f"s_lshl_b32 s{sA}, s{sA}, 14")
    I(f"s_add_u32 s{sA}, s{sA}, {QP0}")
    I(f"v_lshl_add_u32 v{vQG}, v{vTid}, 4, s{sA}")
    I(f"v_and_b32 v{t0}, 7, v{vN}")
    I(f"v_lshlrev_b32 v{t0}, 8, v{t0}")
    I(f"v_lshl_add_u32 v{t0}, v{vG}, 4, v{t0}")
    I(f"v_add_u32 v{vQB}, {QBF}, v{t0}")

    A.waitvm("x")
    stamp("x")
    XU = [S[48:64], T[16:32]]
    for b in range(2):
        for i in range(8):
            I(f"v_lshlrev_b32 v{XU[b][2*i]}, 16, v{XR[8*b+i]}")
            I(f"v_and_b32 v{XU[b][2*i+1]}, 0xffff0000, v{XR[8*b+i]}")
    sm = [T[0], T[1]]; tm = [T[2], T[3]]
    for b in range(2):
        I(f"v_add_f32 v{sm[b]}, v{XU[b][0]}, v{XU[b][1]}")
    for i in range(2, 16):
        for b in range(2):
            I(f"v_add_f32 v{sm[b]}, v{sm[b]}, v{XU[b][i]}")
    allreduce("add", sm, tm)
    for b in range(2): I(f"v_mul_f32 v{sm[b]}, 0x{f2u(1/1024):08x}, v{sm[b]}")
    ss = [T[4], T[5]]
    for i in range(16):
        for b in range(2):
            I(f"v_sub_f32 v{XU[b][i]}, v{XU[b][i]}, v{sm[b]}")
    for b in range(2): I(f"v_mul_f32 v{ss[b]}, v{XU[b][0]}, v{XU[b][0]}")
    for i in range(1, 16):
        for b in range(2):
            I(f"v_fmac_f32 v{ss[b]}, v{XU[b][i]}, v{XU[b][i]}")
    allreduce("add", ss, tm)
    for b in range(2): I(f"v_mul_f32 v{ss[b]}, 0x{f2u(1/1024):08x}, v{ss[b]}")
    for b in range(2): rnd(sm[b])
    for b in range(2): rnd(ss[b])
    for b in range(2): I(f"v_add_f32 v{ss[b]}, 0x{f2u(1e-5):08x}, v{ss[b]}")
    for b in range(2): rnd(ss[b])
    for b in range(2): I(f"v_sqrt_f32 v{ss[b]}, v{ss[b]}")
    for b in range(2): rnd(ss[b])
    for b in range(2): I(f"v_rcp_f32 v{ss[b]}, v{ss[b]}")
    I(f"v_and_b32 v{T[2]}, 1, v{vN}")
    I(f"v_cmp_eq_u32 vcc, 1, v{T[2]}")
    I(f"v_cndmask_b32 v{T[6]}, v{sm[0]}, v{sm[1]}, vcc")
    I(f"v_cndmask_b32 v{T[7]}, v{ss[0]}, v{ss[1]}, vcc")
    for i in range(8):
        lo, hi = T[8], T[9]
        I(f"v_lshlrev_b32 v{lo}, 16, v{XF[i]}")
        I(f"v_and_b32 v{hi}, 0xffff0000, v{XF[i]}")
        I(f"v_sub_f32 v{lo}, v{lo}, v{T[6]}")
        I(f"v_sub_f32 v{hi}, v{hi}, v{T[6]}")
        rnd(lo); rnd(hi)
        I(f"v_mul_f32 v{lo}, v{lo}, v{T[7]}")
        I(f"v_mul_f32 v{hi}, v{hi}, v{T[7]}")
        I(f"v_cvt_pk_bf16_f32 v{XF[i]}, v{lo}, v{hi}")
    A.waitvm(("it", 1))
    stamp("wq")
    WA = T[16:48]
    for kk in range(2):
        for mt in range(4):
            for h in range(2):
                I(f"ds_read_b64_tr_b16 {vr(WA[(kk*4+mt)*4+2*h],2)}, v{vWR[mt]} offset:{slot_off(kk)+h*2048}")
    I("s_waitcnt lgkmcnt(0)")
    consumed[0] = 2
    QD = S[48:64]
    for kk in range(2):
        for mt in range(4):
            c = "0" if kk == 0 else vr(QD[4*mt], 4)
            I(f"v_mfma_f32_16x16x32_bf16 {vr(QD[4*mt],4)}, {vr(WA[(kk*4+mt)*4],4)}, {vr(XF[4*kk],4)}, {c}")

    def cross_wave_write(D):
        I(f"v_lshlrev_b32 v{T[0]}, 8, v{vN}")
        I(f"v_lshl_add_u32 v{T[0]}, v{vG}, 4, v{T[0]}")
        I(f"s_lshl_b32 s{sA}, s{sW}, 9")
        I(f"s_add_u32 s{sA}, s{sA}, {QRED}")
        I(f"v_add_u32 v{T[0]}, s{sA}, v{T[0]}")
        I(f"s_mov_b32 exec_lo, 0x00030003")
        I(f"s_mov_b32 exec_hi, 0x00030003")
        for mt in range(4):
            I(f"ds_write_b128 v{T[0]}, {vr(D[4*mt],4)} offset:{mt*64}")
        I("s_mov_b64 exec, -1")

    def cross_wave_sum(dst):
        I(f"v_and_b32 v{T[0]}, 7, v{vLane}")
        I(f"v_lshlrev_b32 v{T[0]}, 4, v{T[0]}")
        I(f"s_lshl_b32 s{sA}, s{sW}, 7")
        I(f"s_add_u32 s{sA}, s{sA}, {QRED}")
        I(f"v_add_u32 v{T[0]}, s{sA}, v{T[0]}")
        R = T[4:20]
        for k in range(4):
            I(f"ds_read_b128 {vr(R[4*k],4)}, v{T[0]} offset:{k*512}")
        I("s_waitcnt lgkmcnt(0)")
        for r in range(4):
            I(f"v_add_f32 v{R[r]}, v{R[r]}, v{R[4+r]}")
            I(f"v_add_f32 v{R[8+r]}, v{R[8+r]}, v{R[12+r]}")
        for r in range(4):
            I(f"v_add_f32 v{dst+r}, v{R[r]}, v{R[8+r]}")

    cross_wave_write(QD)
    A.waitvm("w")
    for (r0, dst) in zip(RW, (W1, B1, W2)):
        for i in range(7):
            I(f"v_lshlrev_b32 v{dst[2*i]}, 16, v{r0+i}")
            I(f"v_and_b32 v{dst[2*i+1]}, 0xffff0000, v{r0+i}")
    I(f"v_lshlrev_b32 v{vB2}, 16, v{vB2}")
    I("s_waitcnt lgkmcnt(0)")
    I("s_barrier")
    I(f"s_and_b32 s{sA}, s2, 63")
    I(f"s_lshl_b32 s{sA}, s{sA}, 2")
    I(f"s_cmp_eq_u32 s{sW}, 0")
    I(f"s_cselect_b32 s{sA}, s{sA}, 0x1000")
    I(f"v_mov_b32 v{T[1]}, 0x1000")
    I(f"v_mov_b32 v{T[2]}, s{sA}")
    I(f"v_cmp_eq_u32 vcc, 0, v{vLane}")
    I(f"v_cndmask_b32 v{T[1]}, v{T[1]}, v{T[2]}, vcc")
    I(f"v_mov_b32 v{T[2]}, 1")
    VM(f"buffer_atomic_add v{T[2]}, v{T[1]}, {srd(sDBG)}, 0 offen sc1", "cnt")
    QS = T[24]
    cross_wave_sum(QS)
    VM(f"buffer_store_dwordx4 {vr(QS,4)}, v{vQPa}, {srd(sWS)}, 0 offen sc1", "qpub")
    stamp("qpub")

    vCHK = T[40]
    QGR = T[44:60]
    QF = O[0:16]

    def qk_blocks(ts):
        ts = list(ts)
        for u in range(0, len(ts), 2):
            grp = ts[u:u+2]
            for j in range(4):
                for t in grp:
                    c = "0" if j == 0 else vr(S[4*t], 4)
                    I(f"v_mfma_f32_16x16x32_bf16 {vr(S[4*t],4)}, {ar(16*t+4*j,4)}, {vr(QF[4*j],4)}, {c}")
            if u >= 2:
                qk_post(ts[u-2:u])
        last = ts[(len(ts) - 1) // 2 * 2:]
        qk_post(last)

    maxinit = [False]
    def qk_post(ts):
        regs = [S[4*t+r] for t in ts for r in range(4)]
        for r in regs: rnd(r)
        for r in regs: I(f"v_mul_f32 v{r}, 0x{f2u(SCALE):08x}, v{r}")
        for r in regs: rnd(r)
        k = 0
        if not maxinit[0]:
            I(f"v_max_f32 v{vM}, v{regs[0]}, v{regs[1]}")
            k = 2; maxinit[0] = True
        while k < len(regs):
            I(f"v_max3_f32 v{vM}, v{vM}, v{regs[k]}, v{regs[k+1]}")
            k += 2

    tabk = list(cfg.tab_k); tabv = list(cfg.tab_v)
    ent = [0]
    qk_done = [0]
    for t in range(16):
        it = 2 + t
        A.waitvm(("it", it))
        for j in range(4):
            I(f"ds_read_b128 {ar(16*t+4*j,4)}, v{vKR[j]} offset:{slot_off(it)}")
        I("s_waitcnt lgkmcnt(0)")
        consumed[0] = it + 1
        issue_upto(it + cfg.DK)
        if t == cfg.chk_at:
            I(f"v_lshlrev_b32 v{T[0]}, 2, v{vLane}")
            VM(f"buffer_load_dword v{vCHK}, v{T[0]}, {srd(sDBG)}, 0 offen sc1", "chk")
        if t == cfg.qg_at:
            A.waitvm("chk")
            ok = A.label("chk_ok"); lp = A.label("chk_lp")
            I(f"v_cmp_ne_u32 vcc, 4, v{vCHK}")
            I(f"s_cbranch_vccz {ok}")
            I(f"s_mov_b32 s{sCNT}, {cfg.limit}")
            I(f"v_lshlrev_b32 v{T[0]}, 2, v{vLane}")
            I(f"{lp}:")
            I(f"buffer_load_dword v{vCHK}, v{T[0]}, {srd(sDBG)}, 0 offen sc1")
            I("s_waitcnt vmcnt(0)")
            I(f"v_cmp_ne_u32 vcc, 4, v{vCHK}")
            I(f"s_cbranch_vccz {ok}")
            I(f"s_sub_u32 s{sCNT}, s{sCNT}, 1")
            I(f"s_cmp_lg_u32 s{sCNT}, 0")
            I(f"s_cbranch_scc1 {lp}")
            I(f"{ok}:")
            for k in range(4):
                I(f"s_mov_b32 s{sB}, {k*4096}")
                VM(f"buffer_load_dwordx4 {vr(QGR[4*k],4)}, v{vQG}, {srd(sWS)}, s{sB} offen sc1", "qg")
            stamp("qg_issue")
        if t == cfg.quse_at:
            A.waitvm("qg")
            stamp("qg_land")
            ok = A.label("qg_ok")
            any_sentinel(QGR, T[0])
            I(f"v_cmp_eq_u32 vcc, -1, v{T[0]}")
            I(f"s_cbranch_vccz {ok}")
            lds = []
            for k in range(4):
                lds.append(f"s_mov_b32 s{sB}, {k*4096}")
                lds.append(f"buffer_load_dwordx4 {vr(QGR[4*k],4)}, v{vQG}, {srd(sWS)}, s{sB} offen sc1")
            poll(lds, QGR, T[0], "qg_poll")
            I(f"{ok}:")
            for r in range(4):
                I(f"v_add_f32 v{QGR[r]}, v{QGR[r]}, v{QGR[4+r]}")
                I(f"v_add_f32 v{QGR[8+r]}, v{QGR[8+r]}, v{QGR[12+r]}")
            for r in range(4):
                I(f"v_add_f32 v{QGR[r]}, v{QGR[r]}, v{QGR[8+r]}")
            I(f"v_cvt_pk_bf16_f32 v{QGR[4]}, v{QGR[0]}, v{QGR[1]}")
            I(f"v_cvt_pk_bf16_f32 v{QGR[5]}, v{QGR[2]}, v{QGR[3]}")
            I(f"v_lshlrev_b32 v{T[0]}, 3, v{vTid}")
            I(f"v_add_u32 v{T[0]}, {QBF}, v{T[0]}")
            I(f"ds_write_b64 v{T[0]}, {vr(QGR[4],2)}")
            I("s_waitcnt lgkmcnt(0)")
            I("s_barrier")
            for j in range(4):
                I(f"ds_read_b128 {vr(QF[4*j],4)}, v{vQB} offset:{j*64}")
            I("s_waitcnt lgkmcnt(0)")
            stamp("q_ready")
            qk_blocks(range(0, t + 1))
            qk_done[0] = t + 1
        elif t > cfg.quse_at:
            if (t + 1 - qk_done[0]) == 2 or t == 15:
                qk_blocks(range(qk_done[0], t + 1))
                qk_done[0] = t + 1
        if t in tabk:
            table_entry(ent[0]); ent[0] += 1
    stamp("k_done")
    allreduce("max", [vM], [T[0]], lo_steps=())
    I(f"v_lshlrev_b32 v{T[1]}, 2, v{vN}")
    I(f"s_lshl_b32 s{sA}, s{sW}, 6")
    I(f"s_add_u32 s{sA}, s{sA}, {MX}")
    I(f"v_add_u32 v{T[2]}, s{sA}, v{T[1]}")
    I(f"ds_write_b32 v{T[2]}, v{vM}")
    issue_upto(consumed[0] - 1 + 7)
    I("s_waitcnt lgkmcnt(0)")
    I("s_barrier")
    I(f"v_add_u32 v{T[1]}, {MX}, v{T[1]}")
    for k in range(4):
        I(f"ds_read_b32 v{T[4+k]}, v{T[1]} offset:{k*64}")
    I("s_waitcnt lgkmcnt(0)")
    I(f"v_max3_f32 v{vM}, v{T[4]}, v{T[5]}, v{T[6]}")
    I(f"v_max_f32 v{vM}, v{vM}, v{T[7]}")
    I(f"v_mul_f32 v{T[0]}, 0x{f2u(-LOG2E):08x}, v{vM}")
    I(f"s_mov_b32 s{sA}, 0x{f2u(LOG2E):08x}")
    I(f"v_mov_b32 v{vL}, 0")
    P = S[0:32]
    for c in range(8):
        E = T[4:12]
        src = S[8*c:8*c+8]
        for i in range(8): I(f"v_fma_f32 v{E[i]}, v{src[i]}, s{sA}, v{T[0]}")
        for i in range(8): I(f"v_exp_f32 v{E[i]}, v{E[i]}")
        for i in range(4): I(f"v_cvt_pk_bf16_f32 v{P[4*c+i]}, v{E[2*i]}, v{E[2*i+1]}")
        for i in range(0, 8, 2):
            I(f"v_add_f32 v{E[i]}, v{E[i]}, v{E[i+1]}")
        I(f"v_add_f32 v{E[0]}, v{E[0]}, v{E[2]}")
        I(f"v_add_f32 v{E[4]}, v{E[4]}, v{E[6]}")
        I(f"v_add_f32 v{E[0]}, v{E[0]}, v{E[4]}")
        I(f"v_add_f32 v{vL}, v{vL}, v{E[0]}")
    allreduce("add", [vL], [T[1]], lo_steps=())
    I(f"v_lshlrev_b32 v{T[1]}, 2, v{vN}")
    I(f"s_lshl_b32 s{sA}, s{sW}, 6")
    I(f"s_add_u32 s{sA}, s{sA}, {LS}")
    I(f"v_add_u32 v{T[2]}, s{sA}, v{T[1]}")
    I(f"ds_write_b32 v{T[2]}, v{vL}")
    stamp("p_done")

    for v in range(16):
        it = 18 + v
        A.waitvm(("it", it))
        ab = 128 + 32 * ((v >> 1) & 1)
        for mt in range(8):
            I(f"ds_read_b64_tr_b16 {ar(ab+4*mt+2*(v&1),2)}, v{vVR[mt]} offset:{slot_off(it)}")
        I("s_waitcnt lgkmcnt(0)")
        consumed[0] = it + 1
        if it + cfg.DV <= 33:
            issue_upto(it + cfg.DV)
        if v & 1:
            c = v >> 1
            for mt in range(8):
                cc = "0" if c == 0 else vr(O[4*mt], 4)
                I(f"v_mfma_f32_16x16x32_bf16 {vr(O[4*mt],4)}, {ar(ab+4*mt,4)}, {vr(P[4*c],4)}, {cc}")
        if v in tabv:
            table_entry(ent[0]); ent[0] += 1
        if v == cfg.b4_at:
            assert ent[0] == 16
            a = TACC
            for i in range(8): I(f"v_permlane32_swap_b32 v{a[i]}, v{a[i+8]}")
            for i in range(8): I(f"v_add_f32 v{a[i]}, v{a[i]}, v{a[i+8]}")
            for i in range(4): I(f"v_permlane16_swap_b32 v{a[i]}, v{a[i+4]}")
            for i in range(4): I(f"v_add_f32 v{a[i]}, v{a[i]}, v{a[i+4]}")
            allreduce("add", a[0:4], None, rows=False)
            I(f"v_lshlrev_b32 v{T[0]}, 4, v{vG}")
            I(f"s_lshl_b32 s{sA}, s{sW}, 6")
            I(f"s_add_u32 s{sA}, s{sA}, {TRED}")
            I(f"v_add_u32 v{T[0]}, s{sA}, v{T[0]}")
            I(f"ds_write_b128 v{T[0]}, {vr(a[0],4)}")
            I("s_waitcnt lgkmcnt(0)")
            I("s_barrier")
            I(f"v_lshlrev_b32 v{T[0]}, 2, v{vN}")
            I(f"v_add_u32 v{T[1]}, {TRED}, v{T[0]}")
            I(f"v_add_u32 v{T[0]}, {LS}, v{T[0]}")
            for k in range(4):
                I(f"ds_read_b32 v{T[4+k]}, v{T[1]} offset:{k*64}")
                I(f"ds_read_b32 v{T[8+k]}, v{T[0]} offset:{k*64}")
            I("s_waitcnt lgkmcnt(0)")
            for b0 in (4, 8):
                I(f"v_add_f32 v{T[b0]}, v{T[b0]}, v{T[b0+1]}")
                I(f"v_add_f32 v{T[b0+2]}, v{T[b0+2]}, v{T[b0+3]}")
                I(f"v_add_f32 v{T[b0]}, v{T[b0]}, v{T[b0+2]}")
            rnd(T[4])
            I(f"v_add_f32 v{T[4]}, v{T[4]}, v{vB2}")
            rnd(T[4])
            VM(f"buffer_store_dword v{T[4]}, v{vTBa}, {srd(sWS)}, 0 offen sc1", "tpub")
            I(f"v_mov_b32 v{T[12]}, v{vM}")
            I(f"v_mov_b32 v{T[13]}, v{T[8]}")
            VM(f"buffer_store_dwordx2 {vr(T[12],2)}, v{vMLa}, {srd(sWS)}, 0 offen sc1", "mlpub")
    stamp("v_done")
    I("s_mov_b32 exec_lo, 0x00ff00ff")
    I("s_mov_b32 exec_hi, 0x00ff00ff")
    for mt in range(8):
        I(f"ds_write_b128 v{vOW}, {vr(O[4*mt],4)} offset:{mt*64}")
    I("s_mov_b64 exec, -1")
    I("s_waitcnt lgkmcnt(0)")
    I("s_barrier")
    R = T[4:20]
    for k in range(4):
        I(f"ds_read_b128 {vr(R[4*k],4)}, v{vOR} offset:{k*8*OSTR}")
    I("s_waitcnt lgkmcnt(0)")
    for r in range(4):
        I(f"v_add_f32 v{R[r]}, v{R[r]}, v{R[4+r]}")
        I(f"v_add_f32 v{R[8+r]}, v{R[8+r]}, v{R[12+r]}")
    for r in range(4):
        I(f"v_add_f32 v{R[r]}, v{R[r]}, v{R[8+r]}")
    VM(f"buffer_store_dwordx4 {vr(R[0],4)}, v{vOPa}, {srd(sWS)}, 0 offen sc1", "opub")
    stamp("opub")

    I("s_cmp_lt_u32 s2, 64")
    I("s_cbranch_scc1 L_h2")
    I(f"s_cmp_ge_u32 s{sSPLIT}, 16")
    I("s_cbranch_scc1 L_h1")
    I("s_and_b32 s%d, s2, 0xfe" % sA)
    I(f"s_cmp_eq_u32 s{sA}, 64")
    I("s_cbranch_scc1 L_fin")
    I("s_branch L_exit")

    base_vmq = list(A.vmq)
    base_stamp = nstamp[0]
    I("L_h1:")
    GA, GM = T[0], T[1]
    I(f"s_and_b32 s{sA}, s{sSPLIT}, 15")
    I(f"s_lshl_b32 s{sB}, s{sA}, 2")
    I(f"s_add_u32 s{sB}, s{sB}, s{sW}")
    I(f"s_lshl_b32 s{sB}, s{sB}, 11")
    I(f"s_lshl_b32 s{sC}, s{sPAIR}, 17")
    I(f"s_add_u32 s{sB}, s{sB}, s{sC}")
    I(f"s_add_u32 s{sB}, s{sB}, {OP0}")
    I(f"v_lshl_add_u32 v{GA}, v{vLane}, 5, s{sB}")
    I(f"s_lshr_b32 s{sA}, s{sA}, 1")
    I(f"s_lshl_b32 s{sC}, s{sPAIR}, 3")
    I(f"s_add_u32 s{sA}, s{sA}, s{sC}")
    I(f"s_lshl_b32 s{sA}, s{sA}, 8")
    I(f"s_add_u32 s{sA}, s{sA}, {ML0}")
    I(f"v_lshrrev_b32 v{GM}, 1, v{vLane}")
    I(f"v_lshl_add_u32 v{GM}, v{GM}, 3, s{sA}")
    D8 = T[4:12]; DM = T[12:14]
    poll([f"buffer_load_dwordx4 {vr(D8[0],4)}, v{GA}, {srd(sWS)}, 0 offen sc1",
          f"buffer_load_dwordx4 {vr(D8[4],4)}, v{GA}, {srd(sWS)}, 0 offen offset:16 sc1",
          f"buffer_load_dwordx2 {vr(DM[0],2)}, v{GM}, {srd(sWS)}, 0 offen sc1"], D8 + DM, T[2], "h1_poll")
    stamp("h1_got")
    mx, tt = T[14], T[15]
    I(f"v_mov_b32 v{mx}, v{DM[0]}")
    allreduce("max", [mx], [tt], lo_steps=(2, 4, 8))
    I(f"v_sub_f32 v{tt}, v{DM[0]}, v{mx}")
    I(f"v_mul_f32 v{tt}, 0x{f2u(LOG2E):08x}, v{tt}")
    I(f"v_exp_f32 v{tt}, v{tt}")
    I(f"v_mul_f32 v{DM[1]}, v{DM[1]}, v{tt}")
    for r in D8: I(f"v_mul_f32 v{r}, v{r}, v{tt}")
    for i in range(4): I(f"v_permlane32_swap_b32 v{D8[i]}, v{D8[i+4]}")
    for i in range(4): I(f"v_add_f32 v{D8[i]}, v{D8[i]}, v{D8[i+4]}")
    for i in range(2): I(f"v_permlane16_swap_b32 v{D8[i]}, v{D8[i+2]}")
    for i in range(2): I(f"v_add_f32 v{D8[i]}, v{D8[i]}, v{D8[i+2]}")
    allreduce("add", [D8[0], D8[1]], None, lo_steps=(2, 4, 8), rows=False)
    allreduce("add", [DM[1]], [tt], lo_steps=(2, 4, 8))
    I(f"v_rcp_f32 v{tt}, v{DM[1]}")
    I(f"v_mul_f32 v{D8[0]}, v{D8[0]}, v{tt}")
    I(f"v_mul_f32 v{D8[1]}, v{D8[1]}, v{tt}")
    I(f"v_cvt_pk_bf16_f32 v{D8[0]}, v{D8[0]}, v{D8[1]}")
    VM(f"buffer_store_dword v{D8[0]}, v{vOBa}, {srd(sWS)}, 0 offen sc1", "obpub")
    stamp("h1_pub")
    I("s_branch L_exit")

    A.vmq = list(base_vmq); nstamp[0] = base_stamp
    I("L_h2:")
    issue_upto(41)
    I(f"s_and_b32 s{sA}, s2, 3")
    I(f"s_lshl_b32 s{sA}, s{sA}, 2")
    I(f"s_add_u32 s{sA}, s{sA}, s{sW}")
    I(f"s_lshl_b32 s{sA}, s{sA}, 9")
    I(f"s_add_u32 s{sA}, s{sA}, {OB0}")
    I(f"v_lshrrev_b32 v{T[40]}, 5, v{vLane}")
    I(f"v_lshlrev_b32 v{T[40]}, 13, v{T[40]}")
    I(f"v_and_b32 v{T[41]}, 31, v{vLane}")
    I(f"v_lshl_add_u32 v{T[40]}, v{T[41]}, 4, v{T[40]}")
    I(f"v_add_u32 v{T[40]}, s{sA}, v{T[40]}")
    I(f"v_lshrrev_b32 v{T[42]}, 5, v{vLane}")
    I(f"v_lshlrev_b32 v{T[42]}, 9, v{T[42]}")
    I(f"v_lshrrev_b32 v{T[43]}, 2, v{T[41]}")
    I(f"v_lshl_or_b32 v{T[42]}, v{T[43]}, 6, v{T[42]}")
    I(f"v_and_b32 v{T[43]}, 1, v{T[41]}")
    I(f"v_lshl_or_b32 v{T[42]}, v{T[43]}, 5, v{T[42]}")
    I(f"v_bfe_u32 v{T[43]}, v{T[41]}, 1, 1")
    I(f"v_lshl_or_b32 v{T[42]}, v{T[43]}, 3, v{T[42]}")
    I(f"s_lshl_b32 s{sA}, s{sW}, 10")
    I(f"s_add_u32 s{sA}, s{sA}, {OST}")
    I(f"v_add_u32 v{T[42]}, s{sA}, v{T[42]}")
    I(f"v_and_b32 v{T[43]}, 1, v{vN}")
    I(f"v_lshlrev_b32 v{T[43]}, 9, v{T[43]}")
    I(f"v_lshl_or_b32 v{T[43]}, v{vG}, 4, v{T[43]}")
    I(f"v_add_u32 v{T[43]}, s{sA}, v{T[43]}")
    for blk in range(8):
        it = 34 + blk
        A.waitvm(("it", it))
        for mt in range(4):
            for h in range(2):
                I(f"ds_read_b64_tr_b16 {ar(blk*16+mt*4+2*h,2)}, v{vWR[mt]} offset:{slot_off(it)+h*2048}")
    I("s_waitcnt lgkmcnt(0)")
    stamp("wo_done")
    OG = T[44:48]
    poll([f"buffer_load_dwordx4 {vr(OG[0],4)}, v{T[40]}, {srd(sWS)}, 0 offen sc1"], OG, T[2], "h2_poll")
    stamp("h2_got")
    I(f"ds_write_b64 v{T[42]}, {vr(OG[0],2)}")
    I(f"ds_write_b64 v{T[42]}, {vr(OG[2],2)} offset:16")
    I("s_waitcnt lgkmcnt(0)")
    OF = S[0:32]
    for blk in range(8):
        I(f"ds_read_b128 {vr(OF[4*blk],4)}, v{T[43]} offset:{blk*64}")
    AD = S[48:64]
    for blk in range(8):
        I(f"s_waitcnt lgkmcnt({7-blk})")
        for mt in range(4):
            c = "0" if blk == 0 else vr(AD[4*mt], 4)
            I(f"v_mfma_f32_16x16x32_bf16 {vr(AD[4*mt],4)}, {ar(blk*16+mt*4,4)}, {vr(OF[4*blk],4)}, {c}")
    cross_wave_write(AD)
    I("s_waitcnt lgkmcnt(0)")
    I("s_barrier")
    cross_wave_sum(QS)
    VM(f"buffer_store_dwordx4 {vr(QS,4)}, v{vAPa}, {srd(sWS)}, 0 offen sc1", "appub")
    stamp("h2_pub")
    I("s_branch L_exit")

    A.vmq = list(base_vmq); nstamp[0] = base_stamp
    I("L_fin:")
    XA = T[40]; XV = T[42:44]; GA = T[41]
    I(f"s_and_b32 s{sD}, s2, 1")
    I(f"s_lshl_b32 s{sA}, s{sD}, 11")
    I(f"v_lshl_add_u32 v{XA}, v{vTid}, 3, s{sA}")
    I(f"buffer_load_dwordx2 {vr(XV[0],2)}, v{XA}, {srd(sX)}, 0 offen")
    I(f"v_lshlrev_b32 v{GA}, 4, v{vTid}")
    I(f"v_add_u32 v{T[44]}, {TB0}, v{GA}")
    TT = S[0:16]
    lds = []
    for k in range(4):
        lds.append(f"s_mov_b32 s{sB}, {k*4096}")
        lds.append(f"buffer_load_dwordx4 {vr(TT[4*k],4)}, v{T[44]}, {srd(sWS)}, s{sB} offen sc1")
    poll(lds, TT, T[2], "tb_poll")
    for k in range(4):
        I(f"ds_write_b128 v{GA}, {vr(TT[4*k],4)} offset:{TBL+k*4096}")
    I(f"v_mov_b32 v{T[0]}, {FBN}")
    I(f"v_mov_b32 v{T[1]}, 0")
    I(f"ds_write_b32 v{T[0]}, v{T[1]}")
    stamp("tb_got")
    I(f"s_lshl_b32 s{sA}, s{sD}, 14")
    I(f"s_add_u32 s{sA}, s{sA}, {AP0}")
    I(f"v_add_u32 v{T[44]}, s{sA}, v{GA}")
    AG = S[16:32]
    lds = []
    for k in range(4):
        lds.append(f"s_mov_b32 s{sB}, {k*4096}")
        lds.append(f"buffer_load_dwordx4 {vr(AG[4*k],4)}, v{T[44]}, {srd(sWS)}, s{sB} offen sc1")
    poll(lds, AG, T[2], "ap_poll")
    stamp("ap_got")
    H = S[32:36]; X4 = S[36:40]; Y = S[40:44]
    for r in range(4):
        I(f"v_add_f32 v{AG[r]}, v{AG[r]}, v{AG[4+r]}")
        I(f"v_add_f32 v{AG[8+r]}, v{AG[8+r]}, v{AG[12+r]}")
    I(f"v_lshlrev_b32 v{X4[0]}, 16, v{XV[0]}")
    I(f"v_and_b32 v{X4[1]}, 0xffff0000, v{XV[0]}")
    I(f"v_lshlrev_b32 v{X4[2]}, 16, v{XV[1]}")
    I(f"v_and_b32 v{X4[3]}, 0xffff0000, v{XV[1]}")
    for r in range(4): I(f"v_add_f32 v{AG[r]}, v{AG[r]}, v{AG[8+r]}")
    for r in range(4): rnd(AG[r])
    for r in range(4): I(f"v_add_f32 v{H[r]}, v{AG[r]}, v{X4[r]}")
    for r in range(4): rnd(H[r])

    def ln_finish(mean, var, src, dst):
        rnd(mean); rnd(var)
        I(f"v_add_f32 v{var}, 0x{f2u(1e-5):08x}, v{var}")
        rnd(var)
        I(f"v_sqrt_f32 v{var}, v{var}")
        rnd(var)
        I(f"v_rcp_f32 v{var}, v{var}")
        for r in range(4): I(f"v_sub_f32 v{dst[r]}, v{src[r]}, v{mean}")
        for r in range(4): rnd(dst[r])
        for r in range(4): I(f"v_mul_f32 v{dst[r]}, v{dst[r]}, v{var}")
        for r in range(4): rnd(dst[r])

    s1, s2, tA, tB = T[0], T[1], T[2], T[3]
    I(f"v_add_f32 v{s1}, v{H[0]}, v{H[1]}")
    I(f"v_add_f32 v{tA}, v{H[2]}, v{H[3]}")
    I(f"v_add_f32 v{s1}, v{s1}, v{tA}")
    allreduce("add", [s1], [tA])
    I(f"v_mul_f32 v{s1}, 0x{f2u(1/256):08x}, v{s1}")
    for r in range(4): I(f"v_sub_f32 v{Y[r]}, v{H[r]}, v{s1}")
    I(f"v_mul_f32 v{s2}, v{Y[0]}, v{Y[0]}")
    for r in range(1, 4): I(f"v_fmac_f32 v{s2}, v{Y[r]}, v{Y[r]}")
    allreduce("add", [s2], [tA])
    I(f"s_lshl_b32 s{sA}, s{sW}, 3")
    I(f"s_add_u32 s{sA}, s{sA}, {STAT}")
    I(f"v_mov_b32 v{tA}, s{sA}")
    I(f"ds_write_b64 v{tA}, {vr(s1,2)}")
    I("s_waitcnt lgkmcnt(0)")
    I("s_barrier")
    I(f"v_mov_b32 v{tA}, {STAT}")
    ST = T[4:12]
    I(f"ds_read_b128 {vr(ST[0],4)}, v{tA}")
    I(f"ds_read_b128 {vr(ST[4],4)}, v{tA} offset:16")
    I("s_waitcnt lgkmcnt(0)")
    mean, var = T[12], T[13]
    I(f"v_add_f32 v{mean}, v{ST[0]}, v{ST[2]}")
    I(f"v_add_f32 v{tA}, v{ST[4]}, v{ST[6]}")
    I(f"v_add_f32 v{mean}, v{mean}, v{tA}")
    I(f"v_mul_f32 v{mean}, 0x{f2u(0.25):08x}, v{mean}")
    I(f"v_add_f32 v{var}, v{ST[1]}, v{ST[3]}")
    I(f"v_add_f32 v{tA}, v{ST[5]}, v{ST[7]}")
    I(f"v_add_f32 v{var}, v{var}, v{tA}")
    for k in (0, 2, 4, 6): I(f"v_sub_f32 v{ST[k]}, v{ST[k]}, v{mean}")
    I(f"v_mul_f32 v{tA}, v{ST[0]}, v{ST[0]}")
    for k in (2, 4, 6): I(f"v_fmac_f32 v{tA}, v{ST[k]}, v{ST[k]}")
    I(f"v_fmamk_f32 v{var}, v{tA}, 0x{f2u(256.0):08x}, v{var}")
    I(f"v_mul_f32 v{var}, 0x{f2u(1/1024):08x}, v{var}")
    H1 = S[44:48]
    ln_finish(mean, var, H, H1)
    I(f"v_add_f32 v{s1}, v{H1[0]}, v{H1[1]}")
    I(f"v_add_f32 v{tA}, v{H1[2]}, v{H1[3]}")
    I(f"v_mul_f32 v{s2}, v{H1[0]}, v{H1[0]}")
    I(f"v_add_f32 v{s1}, v{s1}, v{tA}")
    for r in range(1, 4): I(f"v_fmac_f32 v{s2}, v{H1[r]}, v{H1[r]}")
    allreduce("add", [s1, s2], [tA, tB])
    I(f"s_add_u32 s{sA}, s{sA}, 32")
    I(f"v_mov_b32 v{tA}, s{sA}")
    I(f"ds_write_b64 v{tA}, {vr(s1,2)}")
    I("s_waitcnt lgkmcnt(0)")
    I("s_barrier")
    I(f"v_mov_b32 v{tA}, {STAT+32}")
    I(f"ds_read_b128 {vr(ST[0],4)}, v{tA}")
    I(f"ds_read_b128 {vr(ST[4],4)}, v{tA} offset:16")
    I("s_waitcnt lgkmcnt(0)")
    I(f"v_add_f32 v{mean}, v{ST[0]}, v{ST[2]}")
    I(f"v_add_f32 v{tA}, v{ST[4]}, v{ST[6]}")
    I(f"v_add_f32 v{var}, v{ST[1]}, v{ST[3]}")
    I(f"v_add_f32 v{tB}, v{ST[5]}, v{ST[7]}")
    I(f"v_add_f32 v{mean}, v{mean}, v{tA}")
    I(f"v_add_f32 v{var}, v{var}, v{tB}")
    I(f"v_mul_f32 v{mean}, 0x{f2u(1/1024):08x}, v{mean}")
    I(f"v_mul_f32 v{var}, 0x{f2u(1/1024):08x}, v{var}")
    I(f"v_fma_f32 v{var}, -v{mean}, v{mean}, v{var}")
    I(f"v_max_f32 v{var}, 0, v{var}")
    HH = S[48:52]
    ln_finish(mean, var, H1, HH)
    IX = T[4:8]
    for r in range(4):
        I(f"v_bfe_u32 v{IX[r]}, v{HH[r]}, 16, 15")
    for r in range(4):
        I(f"v_subrev_u32 v{IX[r]}, {114 << 7}, v{IX[r]}")
    OORM = [90, 92, 94, 100]
    msk = [(sA, sB)]
    fb = A.label("fb"); nofb = A.label("nofb")
    I(f"v_max_u32 v{T[8]}, v{IX[0]}, v{IX[1]}")
    I(f"v_max3_u32 v{T[8]}, v{T[8]}, v{IX[2]}, v{IX[3]}")
    I(f"v_cmp_lt_u32 vcc, 2047, v{T[8]}")
    I(f"s_mov_b64 s[{sE0}:{sE1}], vcc")
    for r in range(4):
        I(f"v_min_u32 v{T[12+r]}, 2047, v{IX[r]}")
        I(f"v_lshrrev_b32 v{T[16+r]}, 31, v{HH[r]}")
    for r in range(4):
        I(f"v_lshl_or_b32 v{T[12+r]}, v{T[16+r]}, 11, v{T[12+r]}")
    for r in range(4):
        I(f"v_lshlrev_b32 v{T[12+r]}, 2, v{T[12+r]}")
    for r in range(4):
        I(f"ds_read_b32 v{Y[r]}, v{T[12+r]} offset:{TBL}")
    I("s_waitcnt lgkmcnt(0)")
    for r in range(4): I(f"v_add_f32 v{Y[r]}, v{Y[r]}, v{H[r]}")
    I(f"v_cvt_pk_bf16_f32 v{T[20]}, v{Y[0]}, v{Y[1]}")
    I(f"v_cvt_pk_bf16_f32 v{T[21]}, v{Y[2]}, v{Y[3]}")
    I(f"buffer_store_dwordx2 {vr(T[20],2)}, v{XA}, {srd(sOUT)}, 0 offen")
    stamp("out")
    I(f"s_cmp_eq_u64 s[{sE0}:{sE1}], 0")
    skip = A.label("fb_skip")
    I(f"s_cbranch_scc1 {skip}")
    for r in range(4):
        I(f"v_cmp_lt_u32 vcc, 2047, v{IX[r]}")
        I(f"s_and_saveexec_b64 s[{sE0}:{sE1}], vcc")
        nx = A.label("fb_nx")
        I(f"s_cbranch_execz {nx}")
        I(f"v_mov_b32 v{T[0]}, {FBN}")
        I(f"v_mov_b32 v{T[1]}, 1")
        I(f"ds_add_rtn_u32 v{T[1]}, v{T[0]}, v{T[1]}")
        I("s_waitcnt lgkmcnt(0)")
        I(f"v_lshlrev_b32 v{T[1]}, 4, v{T[1]}")
        I(f"v_mov_b32 v{T[24]}, v{HH[r]}")
        I(f"v_mov_b32 v{T[25]}, v{H[r]}")
        I(f"v_add_u32 v{T[26]}, {2*r}, v{XA}")
        I(f"v_mov_b32 v{T[27]}, 0")
        I(f"ds_write_b128 v{T[1]}, {vr(T[24],4)} offset:{FLIST}")
        I(f"{nx}:")
        I("s_mov_b64 exec, -1")
    I(f"{skip}:")
    I("s_waitcnt vmcnt(0) lgkmcnt(0)")
    I("s_barrier")
    I(f"v_mov_b32 v{T[0]}, {FBN}")
    I(f"ds_read_b32 v{T[1]}, v{T[0]}")
    I("s_waitcnt lgkmcnt(0)")
    I(f"v_readfirstlane_b32 s{sC}, v{T[1]}")
    I(f"s_cmp_eq_u32 s{sC}, 0")
    I("s_cbranch_scc1 L_exit")
    I(f"s_mov_b32 s{sD}, 0")
    lp = A.label("fb_lp")
    I(f"{lp}:")
    I(f"s_lshl_b32 s{sA}, s{sD}, 4")
    I(f"v_mov_b32 v{T[40]}, s{sA}")
    I(f"ds_read_b128 {vr(T[44],4)}, v{T[40]} offset:{FLIST}")
    I("s_waitcnt lgkmcnt(0)")
    I(f"v_readfirstlane_b32 s{sS}, v{T[44]}")
    mlp_eval(T[48], sS)
    allreduce("add", [T[48]], [T[49]])
    I(f"s_and_b32 s{sA}, s{sD}, 1")
    I(f"s_lshl_b32 s{sA}, s{sA}, 4")
    I(f"s_add_u32 s{sA}, s{sA}, {FBP}")
    I(f"s_lshl_b32 s{sB}, s{sW}, 2")
    I(f"s_add_u32 s{sB}, s{sB}, s{sA}")
    I(f"v_mov_b32 v{T[49]}, s{sB}")
    I(f"ds_write_b32 v{T[49]}, v{T[48]}")
    I("s_waitcnt lgkmcnt(0)")
    I("s_barrier")
    I(f"v_mov_b32 v{T[49]}, s{sA}")
    I(f"ds_read_b128 {vr(T[52],4)}, v{T[49]}")
    I("s_waitcnt lgkmcnt(0)")
    I(f"v_add_f32 v{T[52]}, v{T[52]}, v{T[53]}")
    I(f"v_add_f32 v{T[54]}, v{T[54]}, v{T[55]}")
    I(f"v_add_f32 v{T[52]}, v{T[52]}, v{T[54]}")
    rnd(T[52])
    I(f"v_add_f32 v{T[52]}, v{T[52]}, v{vB2}")
    rnd(T[52])
    I(f"v_add_f32 v{T[52]}, v{T[52]}, v{T[45]}")
    I(f"v_cvt_pk_bf16_f32 v{T[52]}, v{T[52]}, v{T[52]}")
    I(f"v_cmp_eq_u32 vcc, 0, v{vTid}")
    I(f"v_mov_b32 v{T[53]}, {OOB}")
    I(f"v_cndmask_b32 v{T[53]}, v{T[53]}, v{T[46]}, vcc")
    I(f"buffer_store_short v{T[52]}, v{T[53]}, {srd(sOUT)}, 0 offen")
    I(f"s_add_u32 s{sD}, s{sD}, 1")
    I(f"s_cmp_lt_u32 s{sD}, s{sC}")
    I(f"s_cbranch_scc1 {lp}")

    I("L_exit:")
    write_stamps()
    I("L_end:")

    ref = open("sequential_preLN__gqa_block_cached__mixer_token_mlp__decode.s.ref").read().split("\n")
    hdr = "\n".join(l for l in ref[:ref.index([x for x in ref if x.startswith("; @launch")][0])]) + "\n"
    head = hdr + f"""; @launch grid=(256,1,1) block=(256,1,1) lds={LDS_BYTES}
.amdgcn_target "amdgcn-amd-amdhsa--gfx950"
.text
.globl {NAME}
.p2align 8
.type {NAME},@function
{NAME}:
"""
    tail = f"""  s_endpgm
.section .rodata,"a"
.p2align 6
.amdhsa_kernel {NAME}
  .amdhsa_next_free_vgpr 512
  .amdhsa_next_free_sgpr 102
  .amdhsa_accum_offset 256
  .amdhsa_group_segment_fixed_size 0
  .amdhsa_kernarg_size 104
  .amdhsa_user_sgpr_count 2
  .amdhsa_user_sgpr_kernarg_segment_ptr 1
  .amdhsa_system_sgpr_workgroup_id_x 1
.end_amdhsa_kernel
"""
    return head + A.text() + tail, stampnames


if __name__ == "__main__":
    cfg = Cfg()
    out = sys.argv[1]
    for kv in sys.argv[2:]:
        k, v = kv.split("=")
        setattr(cfg, k, eval(v))
    txt, names = gen(cfg)
    open(out, "w").write(txt)
    print("written", out, len(txt), "bytes", txt.count("\n"), "lines; stamps:", names)
```

```python
import re

TRANS = ("v_exp_f32", "v_log_f32", "v_rcp_f32", "v_rsq_f32", "v_sqrt_f32", "v_sin_f32", "v_cos_f32")


def split_ops(s):
    out, depth, cur = [], 0, ""
    for ch in s:
        if ch == "[":
            depth += 1
        elif ch == "]":
            depth -= 1
        if ch == "," and depth == 0:
            out.append(cur.strip()); cur = ""
        else:
            cur += ch
    if cur.strip():
        out.append(cur.strip())
    return out


def regs_of(op):
    op = op.strip()
    tok = op.split()[0] if op else ""
    m = re.fullmatch(r"([vas])(\d+)", tok)
    if m:
        return {(m.group(1), int(m.group(2)))}
    m = re.fullmatch(r"([vas])\[(\d+):(\d+)\]", tok)
    if m:
        return {(m.group(1), i) for i in range(int(m.group(2)), int(m.group(3)) + 1)}
    if tok in ("vcc", "vcc_lo", "vcc_hi"):
        return {("s", "vcc")}
    if tok in ("exec", "exec_lo", "exec_hi"):
        return {("s", "exec")}
    if tok == "m0":
        return {("s", "m0")}
    return set()


class Ins:
    def __init__(self, text):
        self.text = text
        t = text.split(";")[0].strip()
        self.is_label = t.endswith(":")
        self.empty = (t == "") or t.startswith(".")
        if self.is_label or self.empty:
            self.mn = ""
            return
        parts = t.split(None, 1)
        self.mn = parts[0]
        rest = parts[1] if len(parts) > 1 else ""
        self.ops = split_ops(rest)
        self.rest = rest
        mn = self.mn
        self.mfma = mn.startswith("v_mfma")
        self.valu = mn.startswith("v_") and not self.mfma
        self.trans = any(mn.startswith(x) for x in TRANS)
        self.dpp = ("row_" in rest) or ("quad_perm" in rest) or ("wave_" in rest) or mn.endswith("_dpp")
        self.perml = mn.startswith("v_permlane")
        self.rdlane = mn.startswith("v_readlane") or mn.startswith("v_readfirstlane")
        self.vmem = mn.startswith("buffer_") or mn.startswith("global_")
        self.ds = mn.startswith("ds_")
        self.salu = mn.startswith("s_")
        self.branch = mn.startswith("s_cbranch") or mn == "s_branch"
        self.dot = mn.startswith("v_dot")
        self.lds_dma = self.vmem and re.search(r"\blds\b", rest) is not None
        R = [regs_of(o) for o in self.ops]
        self.w, self.r = set(), set()
        if self.mfma:
            self.w = R[0]
            self.a_b = R[1] | R[2]
            self.c = R[3] if len(R) > 3 else set()
            self.r = self.a_b | self.c
        elif self.valu:
            if self.perml and "swap" in mn:
                self.w = R[0] | R[1]; self.r = R[0] | R[1]
            elif mn.startswith("v_cmp"):
                self.w = R[0]
                for x in R[1:]: self.r |= x
            elif "_co_" in mn:
                self.w = R[0] | R[1]
                for x in R[2:]: self.r |= x
            else:
                self.w = R[0]
                for x in R[1:]: self.r |= x
                if self.dot:
                    self.dot_ab = R[1] | R[2]
                if mn.startswith("v_fmac") or mn.startswith("v_dot2c") or mn.startswith("v_mac") or self.dpp or mn.startswith("v_writelane"):
                    self.r |= R[0]
                if mn.startswith("v_cndmask") and len(R) == 3:
                    self.r |= {("s", "vcc")}
        elif self.vmem:
            is_store = "store" in mn
            is_atomic = "atomic" in mn
            if self.lds_dma:
                for x in R: self.r |= x
                self.r |= {("s", "m0")}
            elif is_store or is_atomic:
                for x in R: self.r |= x
                self.store_data = R[0]
            else:
                self.w = R[0]
                for x in R[1:]: self.r |= x
        elif self.ds:
            if mn.startswith("ds_read") or "_rtn" in mn or "permute" in mn or "swizzle" in mn:
                self.w = R[0]
                for x in R[1:]: self.r |= x
            else:
                for x in R: self.r |= x
        elif self.salu:
            if mn.startswith("s_cmp") or mn.startswith("s_waitcnt") or self.branch or mn in ("s_nop", "s_barrier", "s_endpgm", "s_setprio", "s_sleep"):
                for x in R: self.r |= x
            else:
                if R: self.w = R[0]
                for x in R[1:]: self.r |= x
                if "saveexec" in mn:
                    self.w |= {("s", "exec")}


def fix_hazards(lines):
    out = []
    T = 0
    wv = {}
    wtr = {}
    wm = {}
    ws = {}
    wdot = {}
    cread = {}
    sdata = {}
    m0t = [-100]
    nins = 0

    def pad(need):
        nonlocal T
        n = need - T
        while n > 0:
            k = min(n, 16)
            out.append(f"  s_nop {k-1}")
            T += k; n -= k

    for raw in lines:
        ins = Ins(raw)
        if ins.is_label or ins.empty:
            out.append(raw)
            continue
        need = T

        def req(tbl, regs, ws_, key=lambda x: x):
            nonlocal need
            for r in regs:
                if r in tbl:
                    need = max(need, key(tbl[r]) + 1 + ws_)
        vr = lambda S: {r for r in S if r[0] in "va"}
        sr = lambda S: {r for r in S if r[0] == "s"}
        if ins.valu:
            if ins.dpp or ins.perml:
                req(wv, vr(ins.r), 2); req(wtr, vr(ins.r), 2)
            if ins.rdlane:
                req(wv, vr(ins.r), 1); req(wtr, vr(ins.r), 1)
                if ins.mn.startswith("v_readlane"):
                    req(ws, sr(ins.r), 4)
            if ins.mn.startswith("v_writelane"):
                req(ws, sr(ins.r), 4)
            req(ws, sr(ins.r), 2)
            if not ins.trans:
                req(wtr, vr(ins.r), 1)
            else:
                pass
            req(wm, vr(ins.r) | vr(ins.w), 8, key=lambda x: x[0])
            req(cread, vr(ins.w), 3)
            req(sdata, vr(ins.w), 2)
            for r in vr(ins.r) | vr(ins.w):
                if r in wdot:
                    t_, mn_ = wdot[r]
                    if ins.dot and mn_ == ins.mn and r in ins.w and r not in ins.dot_ab:
                        continue
                    need = max(need, t_ + 1 + 3)
        elif ins.mfma:
            req(wv, vr(ins.r), 2); req(wtr, vr(ins.r), 2); req(wdot, vr(ins.r), 3, key=lambda x: x[0])
            req(wm, vr(ins.a_b), 8, key=lambda x: x[0])
            for r in vr(ins.c):
                if r in wm:
                    t, D = wm[r]
                    if D != ins.c:
                        need = max(need, t + 1 + 6)
            for r in vr(ins.w):
                if r in wm and r not in ins.c:
                    need = max(need, wm[r][0] + 1 + 6)
        elif ins.vmem or ins.ds:
            req(wm, vr(ins.r) | vr(ins.w), 8, key=lambda x: x[0])
            req(wtr, vr(ins.r), 1)
            req(wdot, vr(ins.r), 3, key=lambda x: x[0])
            if ins.vmem:
                req(ws, sr(ins.r), 5)
                if ins.lds_dma:
                    need = max(need, m0t[0] + 1 + 1)
            req(sdata, vr(ins.w), 1)
        elif ins.salu:
            if ins.branch or ins.mn == "s_endpgm":
                for tbl, w_, key in ((wv, 2, None), (wtr, 2, None), (ws, 5, None), (cread, 3, None), (sdata, 2, None)):
                    for r, t in tbl.items():
                        need = max(need, t + w_)
                for r, (t, mn_) in wdot.items():
                    need = max(need, t + 3)
                for r, (t, D) in wm.items():
                    need = max(need, t + 8)
                need = max(need, m0t[0] + 1)
        pad(need)
        out.append(raw)
        nins += 1
        now = T
        if ins.mn == "s_nop":
            T += int(ins.ops[0]) + 1
        else:
            T += 1
        if ins.valu:
            for r in ins.w:
                if r[0] in "va":
                    wv[r] = now
                    wm.pop(r, None)
                    if ins.trans: wtr[r] = now
                    else: wtr.pop(r, None)
                    if ins.dot: wdot[r] = (now, ins.mn)
                    else: wdot.pop(r, None)
                else:
                    ws[r] = now
        elif ins.mfma:
            D = frozenset(ins.w)
            for r in ins.w:
                wm[r] = (now, set(D)); wv.pop(r, None); wtr.pop(r, None)
            for r in ins.c:
                cread[r] = now
        elif ins.vmem:
            if hasattr(ins, "store_data") and len(ins.store_data) >= 3:
                for r in ins.store_data: sdata[r] = now
        elif ins.salu:
            for r in ins.w:
                if r == ("s", "m0"): m0t[0] = now
                ws.pop(r, None)
        if nins % 64 == 0:
            for tbl in (wv, wtr, ws, cread, sdata):
                for r in [r for r, t in tbl.items() if t < T - 20]: del tbl[r]
            for r in [r for r, (t, m_) in wdot.items() if t < T - 20]: del wdot[r]
            for r in [r for r, (t, D) in wm.items() if t < T - 20]: del wm[r]
    return out


class Asm:
    def __init__(self):
        self.L = []
        self.vmq = []
        self.nlab = 0

    def I(self, s):
        for ln in s.strip("\n").split("\n"):
            ln = ln.strip()
            if ln:
                self.L.append(ln if ln.endswith(":") else "  " + ln)

    def capture(self, fn):
        save = self.L
        self.L = []
        fn()
        got = self.L
        self.L = save
        return got

    def merge(self, fill, groups, start=0, stop=1.0):
        n = len(fill); k = len(groups)
        pos = [start + int(j * (n * stop - start) / max(k, 1)) for j in range(k)]
        j = 0
        for i in range(n + 1):
            while j < k and pos[j] <= i:
                self.L.extend(groups[j]); j += 1
            if i < n: self.L.append(fill[i])
        while j < k:
            self.L.extend(groups[j]); j += 1

    def C(self, s):
        self.L.append("  ; " + s)

    def VM(self, s, tag=None):
        self.I(s)
        self.vmq.append(tag)

    def vm_pending_after(self, tag):
        idx = max(i for i, t in enumerate(self.vmq) if t == tag)
        return len(self.vmq) - 1 - idx

    def waitvm(self, tag, extra=""):
        n = self.vm_pending_after(tag)
        assert n <= 63, (tag, n)
        self.I(f"s_waitcnt vmcnt({n}){extra}")

    def drain(self):
        self.I("s_waitcnt vmcnt(0)")

    def label(self, base):
        self.nlab += 1
        return f"L_{base}_{self.nlab}"

    def text(self):
        return "\n".join(fix_hazards(self.L)) + "\n"


def resolve_vm(lines):
    out = []
    q = []
    saved = {}
    reads_issued = set(); reads_done = set()
    for ln in lines:
        t = ln.strip()
        if t.startswith(";@"):
            parts = t[2:].split()
            if parts[0] == "save": saved[parts[1]] = (list(q), set(reads_issued), set(reads_done))
            elif parts[0] == "restore":
                a, b, c = saved[parts[1]]; q = list(a); reads_issued = set(b); reads_done = set(c)
            elif parts[0] == "drained": q = []
            elif parts[0] == "reads": reads_issued.add(int(parts[1]))
            elif parts[0] == "need":
                assert int(parts[1]) in reads_done, ("ring slot still busy", parts[1], ln, sorted(reads_done)[-3:])
            else: raise ValueError(t)
            continue
        m = re.search(r"vmcnt\(@([^)]*)\)", ln)
        if m:
            tag = m.group(1)
            idx = max(i for i, x in enumerate(q) if x == tag) if tag in q else None
            assert idx is not None, ("tag not in queue", tag, ln)
            n = len(q) - 1 - idx
            assert n <= 63, (tag, n)
            ln = ln.replace(m.group(0), f"vmcnt({n})") + f"   ; {tag}"
        if "lgkmcnt(0)" in ln:
            reads_done |= reads_issued
        m = re.search(r";@vm=(\S+)", ln)
        if m:
            q.append(m.group(1))
            ln = ln[:m.start()].rstrip()
        elif t.startswith("buffer_") or t.startswith("global_"):
            assert ";@untracked" in ln, ("untracked vmem", ln)
            ln = ln.replace(";@untracked", "").rstrip()
        out.append(ln)
    return out


class Asm2(Asm):
    def VM(self, s, tag="_"):
        self.I(f"{s} ;@vm={tag}")
    def U(self, s):
        self.I(f"{s} ;@untracked")
    def waitvm(self, tag, extra=""):
        self.I(f"s_waitcnt vmcnt(@{tag}){extra}")
    def D(self, s):
        self.L.append("  ;@" + s)
    def text(self):
        return "\n".join(fix_hazards(resolve_vm(self.L))) + "\n"
```

```python
import sys, math, struct
sys.path.insert(0, "work")
from asmlib import Asm2

NAME = "sequential_preLN__gqa_block_cached__mixer_token_mlp__decode_kernel"

def f2u(x):
    return struct.unpack("<I", struct.pack("<f", x))[0]

QP0 = 0x000000
OP0 = 0x100000
ML0 = 0x200000
OB0 = 0x210000
AP0 = 0x220000
TB0 = 0x230000
ST0 = 0xF000000
OOB = 0x80000000

MISC = 131072
QRED = MISC + 0
QBF  = MISC + 2048
MX   = MISC + 4096
LS   = MISC + 4352
TRED = MISC + 4608
OST  = MISC + 5120
STAT = MISC + 9216
FBN  = MISC + 9344
FBP  = MISC + 9360
ORED = MISC + 14336
OSTR = 576
TBL  = 0
FLIST = 16384
LDS_BYTES = 163840

sK, sV, sWQ, sWO, sX, sWS, sDBG, sOUT, sW1, sB1, sW2, sB2 = 4, 8, 12, 16, 20, 24, 28, 32, 36, 40, 44, 48
sW, sPAIR, sSPLIT, sKV0, sRING, sWQ0, sWO0 = 52, 53, 54, 55, 56, 57, 58
sA, sB, sC, sD, sCNT, sS, sT0 = 59, 60, 61, 62, 63, 96, 97
sDM = 3
sE0, sE1 = 98, 99
sK2 = 100
sCH = 64
STAMP0 = 80
NST = 8

def srd(b): return f"s[{b}:{b+3}]"

vTid, vLane = 0, 1
vKD = [2, 3, 4, 5]; vVD = [6, 7]; vWD = 8; vWD2 = 9
vKR = [10, 11, 12, 13]; vVR = list(range(14, 22)); vWR = [22, 23, 24, 25]
vQPa, vOPa, vMLa, vOBa, vAPa, vTBa = 26, 27, 28, 29, 30, 31
vN, vG, vOW, vOR = 32, 33, 34, 35
vK1, vONE = 36, 38
W1 = list(range(40, 54)); B1 = list(range(54, 68)); W2 = list(range(68, 75))
vM, vL, vB2, vQG, vQB, vTG = 75, 76, 77, 78, 79, 80
TACC = list(range(84, 100))
S = list(range(100, 164))
O = list(range(164, 196))
T = list(range(196, 256))

def vr(a, n=2): return f"v[{a}:{a+n-1}]"
def ar(a, n): return f"a[{a}:{a+n-1}]"

LOG2E = 1.4426950408889634
SCALE = 0.08838834764831845

class Cfg:
    npre = 2
    nln = 4
    DK = 6
    DV = 7
    chk_at = 5
    chk_gap = 2
    quse_at = 13
    tab = ["k0", "k1", "k2", "k3", "k4", "k5", "k6", "k7", "k8", "k9", "k10", "k11", "k12", "k14", "v2", "v3"]
    b4_at = 4
    wo_at = [12, 13, 14, 15]
    tbg_at = 13
    limit = 20000
    profile = False
    skip = ()
    stampset = ["start", "x", "qpub", "q_ready", "k_done", "v_done", "opub", "out"]
    dma_stop = 0.7


def gen(cfg):
    A = Asm2()
    I, VM, U = A.I, A.VM, A.U
    DK = cfg.DK if isinstance(cfg.DK, (list, tuple)) else [cfg.DK] * 16
    DV = cfg.DV if isinstance(cfg.DV, (list, tuple)) else [cfg.DV] * 16

    def stamp(name):
        if not cfg.profile or name not in cfg.stampset:
            return
        k = cfg.stampset.index(name)
        assert k < NST
        I(f"s_memrealtime s[{STAMP0+2*k}:{STAMP0+2*k+1}]")

    def write_stamps():
        if not cfg.profile:
            return
        I("s_waitcnt lgkmcnt(0)")
        I(f"v_mov_b32 v{T[0]}, 0")
        for k in range(NST):
            I(f"v_writelane_b32 v{T[0]}, s{STAMP0+2*k}, {k}")
        I(f"s_getreg_b32 s{sA}, hwreg(HW_REG_XCC_ID)")
        I(f"v_writelane_b32 v{T[0]}, s{sA}, 16")
        I(f"v_writelane_b32 v{T[0]}, s{sCH+1}, 17")
        I(f"s_lshl_b32 s{sA}, s2, 2")
        I(f"s_add_u32 s{sA}, s{sA}, s{sW}")
        I(f"s_lshl_b32 s{sA}, s{sA}, 7")
        I(f"s_add_u32 s{sA}, s{sA}, {ST0}")
        I(f"v_lshlrev_b32 v{T[1]}, 2, v{vLane}")
        I(f"v_cmp_gt_u32 vcc, 32, v{vLane}")
        I(f"v_mov_b32 v{T[2]}, {OOB}")
        I(f"v_cndmask_b32 v{T[1]}, v{T[2]}, v{T[1]}, vcc")
        U(f"buffer_store_dword v{T[0]}, v{T[1]}, {srd(sWS)}, s{sA} offen")

    def rnd(d, s_=None):
        I(f"v_cvt_pk_bf16_f32 v{d}, 0, v{d if s_ is None else s_}")

    def allreduce(op, regs, tmps, lo_steps=(8, 4, 2, 1), rows=True):
        for st in lo_steps:
            for r in regs:
                I(f"v_{op}_f32_dpp v{r}, v{r}, v{r} row_ror:{st} row_mask:0xf bank_mask:0xf")
        if rows:
            for sw in ("16", "32"):
                for r, t in zip(regs, tmps):
                    I(f"v_mov_b32 v{t}, v{r}")
                for r, t in zip(regs, tmps):
                    I(f"v_permlane{sw}_swap_b32 v{r}, v{t}")
                for r, t in zip(regs, tmps):
                    I(f"v_{op}_f32 v{r}, v{r}, v{t}")

    def any_sentinel(regs, t):
        regs = list(regs)
        if len(regs) == 1:
            I(f"v_mov_b32 v{t}, v{regs[0]}")
            return
        if len(regs) == 2:
            I(f"v_max_u32 v{t}, v{regs[0]}, v{regs[1]}")
            return
        I(f"v_max3_u32 v{t}, v{regs[0]}, v{regs[1]}, v{regs[2]}")
        rest = regs[3:]
        while len(rest) >= 2:
            I(f"v_max3_u32 v{t}, v{t}, v{rest[0]}, v{rest[1]}")
            rest = rest[2:]
        if rest:
            I(f"v_max_u32 v{t}, v{t}, v{rest[0]}")

    def poll(loads, regs, t, base, drained=True):
        lp, dn = A.label(base), A.label(base + "_done")
        I(f"s_mov_b32 s{sCNT}, {cfg.limit}")
        I(f"{lp}:")
        for ld in loads:
            if ld.startswith("buffer_"): U(ld)
            else: I(ld)
        I("s_waitcnt vmcnt(0)")
        any_sentinel(regs, t)
        I(f"v_cmp_eq_u32 vcc, -1, v{t}")
        I("s_mov_b64 exec, vcc")
        I(f"s_cbranch_execz {dn}")
        I(f"s_sub_u32 s{sCNT}, s{sCNT}, 1")
        I(f"s_cmp_lg_u32 s{sCNT}, 0")
        I(f"s_cbranch_scc1 {lp}")
        I(f"{dn}:")
        I("s_mov_b64 exec, -1")
        if drained: A.D("drained")

    items = [("WQ", 0), ("WQ", 1)] + [("K", t) for t in range(16)] + [("V", t) for t in range(16)] + [("WO", t) for t in range(4)]
    issued = [0]

    def item_groups(i):
        kind, t = items[i]
        slot = i % 8
        G = []
        for q in range(4):
            def f():
                if q == 0:
                    if i >= 8: A.D(f"need {i-8}")
                    I(f"s_add_u32 m0, s{sRING}, {slot*4096}")
                if kind in ("K", "V"):
                    if q == 0: I(f"s_add_u32 s{sDM}, s{sKV0}, {t*524288}")
                    va = vKD[q] if kind == "K" else vVD[q & 1]
                    VM(f"buffer_load_dwordx4 v{va}, {srd(sK if kind == 'K' else sV)}, s{sDM} offen offset:{q*1024} nt lds", f"it{i}")
                else:
                    stride = 8192 if kind == "WQ" else 2048
                    base = sWQ0 if kind == "WQ" else sWO0
                    va = vWD if kind == "WQ" else vWD2
                    row = t * 32 + q * 8
                    assert row * stride - q * 1024 >= 0
                    I(f"s_add_u32 s{sDM}, s{base}, {row*stride - q*1024}")
                    VM(f"buffer_load_dwordx4 v{va}, {srd(sWQ if kind == 'WQ' else sWO)}, s{sDM} offen offset:{q*1024} nt lds", f"it{i}")
            G.append(A.capture(f))
        return G

    def groups_upto(i, last=33):
        G = []
        while issued[0] <= min(i, last):
            G += item_groups(issued[0])
            issued[0] += 1
        return G

    def emit(G):
        for g in G: A.L.extend(g)

    def slot_off(i): return (i % 8) * 4096

    K1 = -2.0 * math.sqrt(2.0 / math.pi) * LOG2E
    K2 = K1 * 0.044715

    def mlp_prod(P):
        for i in range(7): I(f"v_pk_mul_f32 {vr(P[2*i])}, s[{sS}:{sS+1}], {vr(W1[2*i])} op_sel_hi:[0,1]")
        for i in range(14): rnd(P[i])

    def mlp_act(acc, P, neg):
        Uu = T[0:14]; Z = T[14:28]
        ng = " neg_lo:[0,1] neg_hi:[0,1]" if neg else ""
        for i in range(7): I(f"v_pk_add_f32 {vr(Uu[2*i])}, {vr(B1[2*i])}, {vr(P[2*i])}{ng}")
        for i in range(14): rnd(Uu[i])
        for i in range(7): I(f"v_pk_mul_f32 {vr(Z[2*i])}, {vr(Uu[2*i])}, {vr(Uu[2*i])}")
        for i in range(7): I(f"v_pk_fma_f32 {vr(Z[2*i])}, {vr(Z[2*i])}, s[{sK2}:{sK2+1}], {vr(vK1)} op_sel_hi:[1,0,1]")
        for i in range(7): I(f"v_pk_mul_f32 {vr(Z[2*i])}, {vr(Z[2*i])}, {vr(Uu[2*i])}")
        for i in range(14): I(f"v_exp_f32 v{Z[i]}, v{Z[i]}")
        for i in range(7): I(f"v_pk_add_f32 {vr(Z[2*i])}, {vr(Z[2*i])}, {vr(vONE)}")
        for i in range(14): I(f"v_rcp_f32 v{Z[i]}, v{Z[i]}")
        for i in range(7): I(f"v_pk_mul_f32 {vr(Z[2*i])}, {vr(Z[2*i])}, {vr(Uu[2*i])}")
        for i in range(7): I(f"v_cvt_pk_bf16_f32 v{Uu[i]}, v{Z[2*i]}, v{Z[2*i+1]}")
        for i in range(7): I(f"v_dot2c_f32_bf16 v{acc}, v{Uu[i]}, v{W2[i]}")

    tabn = [0]
    def table_phase(P):
        h = tabn[0]; tabn[0] += 1
        if "tab" in cfg.skip: return
        j, neg = h >> 1, h & 1
        if not neg:
            I(f"s_add_u32 s{sS}, s{sT0}, {j << 16}")
            mlp_prod(P)
        mlp_act(TACC[8 * neg + j], P, neg)

    I("s_cmp_ge_u32 s2, 256")
    I("s_cbranch_scc1 L_end")
    I("s_load_dwordx16 s[64:79], s[0:1], 0")
    I("s_load_dwordx8 s[80:87], s[0:1], 64")
    I("s_load_dwordx2 s[88:89], s[0:1], 96")
    t0, t1, t2, t3, t4, t5 = T[0:6]
    I(f"v_lshrrev_b32 v{t0}, 6, v0")
    I(f"v_and_b32 v{vLane}, 63, v0")
    I(f"v_readfirstlane_b32 s{sW}, v{t0}")
    I(f"v_and_b32 v{vN}, 15, v{vLane}")
    I(f"v_lshrrev_b32 v{vG}, 4, v{vLane}")
    for b, n in ((sX, 4096), (sWQ, 1 << 23), (sK, 1 << 26), (sWS, 1 << 28), (sV, 1 << 26), (sWO, 1 << 23), (sDBG, 256), (sOUT, 4096), (sW1, 7168), (sB1, 7168), (sW2, 7168), (sB2, 2)):
        I(f"s_mov_b32 s{b+2}, {n}")
        I(f"s_mov_b32 s{b+3}, 0x20000")
    I(f"s_and_b32 s{sPAIR}, s2, 7")
    I(f"s_lshr_b32 s{sSPLIT}, s2, 3")
    I(f"s_lshl_b32 s{sA}, s{sSPLIT}, 2")
    I(f"s_add_u32 s{sA}, s{sA}, s{sW}")
    I(f"s_lshl_b32 s{sA}, s{sA}, 12")
    I(f"s_lshl_b32 s{sKV0}, s{sPAIR}, 23")
    I(f"s_add_u32 s{sKV0}, s{sKV0}, s{sA}")
    I(f"s_lshl_b32 s{sRING}, s{sW}, 15")
    I(f"s_lshr_b32 s{sA}, s2, 6")
    I(f"s_lshl_b32 s{sA}, s{sA}, 2")
    I(f"s_add_u32 s{sA}, s{sA}, s{sW}")
    I(f"s_lshl_b32 s{sB}, s{sA}, 6")
    I(f"s_lshl_b32 s{sWQ0}, s{sB}, 13")
    I(f"s_and_b32 s{sC}, s2, 63")
    I(f"s_lshl_b32 s{sC}, s{sC}, 7")
    I(f"s_add_u32 s{sWQ0}, s{sWQ0}, s{sC}")
    vXA, vXF = T[6], T[7]
    I(f"v_lshlrev_b32 v{vXA}, 5, v{vLane}")
    I(f"v_and_b32 v{t0}, 1, v{vN}")
    I(f"v_lshlrev_b32 v{t0}, 11, v{t0}")
    I(f"v_lshl_add_u32 v{t0}, v{vG}, 3, v{t0}")
    I(f"s_lshl_b32 s{sB}, s{sB}, 1")
    I(f"v_add_u32 v{vXF}, s{sB}, v{t0}")
    I(f"v_lshrrev_b32 v{t0}, 3, v{vLane}")
    I(f"v_bfe_u32 v{t1}, v{vLane}, 1, 2")
    I(f"v_bfe_u32 v{t2}, v{vLane}, 4, 2")
    I(f"v_xor_b32 v{t1}, v{t1}, v{t2}")
    I(f"v_lshlrev_b32 v{t1}, 5, v{t1}")
    I(f"v_and_b32 v{t2}, 1, v{vLane}")
    I(f"v_lshl_or_b32 v{t1}, v{t2}, 4, v{t1}")
    I(f"v_lshl_or_b32 v{vWD}, v{t0}, 13, v{t1}")
    I(f"v_lshl_or_b32 v{vWD2}, v{t0}, 11, v{t1}")
    I(f"v_xor_b32 v{t0}, v{vN}, v{vG}")
    I(f"v_lshlrev_b32 v{t1}, 8, v{vG}")
    I(f"v_lshlrev_b32 v{t2}, 8, v{vN}")
    I(f"v_add_u32 v{t2}, s{sRING}, v{t2}")
    for i in range(4):
        I(f"v_xor_b32 v{t3}, {4*i}, v{t0}")
        I(f"v_lshl_or_b32 v{vKD[i]}, v{t3}, 4, v{t1}")
        I(f"v_lshl_add_u32 v{vKR[i]}, v{t3}, 4, v{t2}")
    I("s_waitcnt lgkmcnt(0)")
    for b, p in ((sX, 64), (sWQ, 70), (sWS, 88), (sK, 66), (sW1, 76), (sB1, 78), (sW2, 80), (sB2, 82), (sV, 68), (sWO, 72), (sOUT, 84), (sDBG, 86)):
        I(f"s_mov_b32 s{b}, s{p}")
        I(f"s_mov_b32 s{b+1}, s{p+1}")
    if cfg.profile:
        for k in range(NST):
            I(f"s_mov_b32 s{STAMP0+2*k}, 0")
        I(f"s_mov_b32 s{sCH+1}, 0")
    stamp("start")
    XR = S[0:16]; XF = S[16:24]
    VM(f"buffer_load_dwordx4 {vr(XR[0],4)}, v{vXA}, {srd(sX)}, 0 offen", "x")
    VM(f"buffer_load_dwordx4 {vr(XR[4],4)}, v{vXA}, {srd(sX)}, 0 offen offset:16", "x")
    VM(f"buffer_load_dwordx4 {vr(XR[8],4)}, v{vXA}, {srd(sX)}, 0 offen offset:2048", "x")
    VM(f"buffer_load_dwordx4 {vr(XR[12],4)}, v{vXA}, {srd(sX)}, 0 offen offset:2064", "x")
    for kk in range(2):
        for h in range(2):
            VM(f"buffer_load_dwordx2 {vr(XF[4*kk+2*h],2)}, v{vXF}, {srd(sX)}, 0 offen offset:{64*kk+32*h}", "x")
    emit(groups_upto(1))
    stamp("wq_iss")
    vOOB = T[8]
    I(f"v_mov_b32 v{vOOB}, {OOB}")
    I(f"s_bfe_u32 s{sA}, s2, 0x20004")
    I(f"s_lshl_b32 s{sA}, s{sA}, 1")
    I(f"s_lshr_b32 s{sB}, s{sW}, 1")
    I(f"s_add_u32 s{sA}, s{sA}, s{sB}")
    I(f"s_lshl_b32 s{sA}, s{sA}, 2")
    I(f"s_lshr_b32 s{sC}, s2, 6")
    I(f"s_add_u32 s{sA}, s{sA}, s{sC}")
    I(f"s_lshl_b32 s{sA}, s{sA}, 12")
    I(f"s_and_b32 s{sC}, s2, 15")
    I(f"s_lshl_b32 s{sC}, s{sC}, 8")
    I(f"s_add_u32 s{sA}, s{sA}, s{sC}")
    I(f"s_and_b32 s{sC}, s{sW}, 1")
    I(f"s_lshl_b32 s{sC}, s{sC}, 7")
    I(f"s_add_u32 s{sA}, s{sA}, s{sC}")
    I(f"s_add_u32 s{sA}, s{sA}, {QP0}")
    I(f"v_lshlrev_b32 v{t0}, 4, v{vLane}")
    I(f"v_cmp_gt_u32 vcc, 8, v{vLane}")
    I(f"v_add_u32 v{t1}, s{sA}, v{t0}")
    I(f"v_cndmask_b32 v{vQPa}, v{vOOB}, v{t1}, vcc")
    I(f"s_lshl_b32 s{sA}, s{sB}, 3")
    I(f"s_add_u32 s{sA}, s{sA}, s{sPAIR}")
    I(f"s_lshl_b32 s{sA}, s{sA}, 12")
    I(f"s_add_u32 s{sA}, s{sA}, s{sC}")
    I(f"s_lshl_b32 s{sC}, s{sSPLIT}, 8")
    I(f"s_add_u32 s{sA}, s{sA}, s{sC}")
    I(f"s_add_u32 s{sA}, s{sA}, {AP0}")
    I(f"s_cmp_lt_u32 s2, 128")
    I(f"s_cselect_b32 s{sA}, s{sA}, {OOB}")
    I(f"v_add_u32 v{t1}, s{sA}, v{t0}")
    I(f"v_cndmask_b32 v{vAPa}, v{vOOB}, v{t1}, vcc")
    I(f"s_lshl_b32 s{sA}, s{sPAIR}, 17")
    I(f"s_lshl_b32 s{sB}, s{sSPLIT}, 6")
    I(f"s_add_u32 s{sA}, s{sA}, s{sB}")
    I(f"s_add_u32 s{sA}, s{sA}, {OP0}")
    I(f"v_lshrrev_b32 v{t1}, 2, v{vTid}")
    I(f"v_lshlrev_b32 v{t1}, 11, v{t1}")
    I(f"v_and_b32 v{t2}, 3, v{vTid}")
    I(f"v_lshl_or_b32 v{t1}, v{t2}, 4, v{t1}")
    I(f"v_add_u32 v{vOPa}, s{sA}, v{t1}")
    I(f"s_lshl_b32 s{sA}, s{sPAIR}, 11")
    I(f"s_lshl_b32 s{sB}, s{sSPLIT}, 3")
    I(f"s_add_u32 s{sA}, s{sA}, s{sB}")
    I(f"s_add_u32 s{sA}, s{sA}, {ML0}")
    I(f"s_cmp_eq_u32 s{sW}, 0")
    I(f"s_cselect_b32 s{sA}, s{sA}, {OOB}")
    I(f"v_lshlrev_b32 v{t1}, 8, v{vLane}")
    I(f"v_add_u32 v{t1}, s{sA}, v{t1}")
    I(f"v_cndmask_b32 v{vMLa}, v{vOOB}, v{t1}, vcc")
    I(f"s_lshl_b32 s{sA}, s2, 5")
    I(f"s_add_u32 s{sA}, s{sA}, {TB0}")
    I(f"s_cmp_eq_u32 s{sW}, 0")
    I(f"s_cselect_b32 s{sA}, s{sA}, {OOB}")
    I(f"v_cmp_gt_u32 vcc, 16, v{vLane}")
    I(f"v_lshrrev_b32 v{t1}, 3, v{vLane}")
    I(f"v_lshlrev_b32 v{t1}, 13, v{t1}")
    I(f"v_and_b32 v{t2}, 7, v{vLane}")
    I(f"v_lshl_or_b32 v{t1}, v{t2}, 2, v{t1}")
    I(f"v_add_u32 v{t1}, s{sA}, v{t1}")
    I(f"v_cndmask_b32 v{vTBa}, v{vOOB}, v{t1}, vcc")
    I(f"s_lshr_b32 s{sA}, s{sPAIR}, 2")
    I(f"s_lshl_b32 s{sA}, s{sA}, 13")
    I(f"s_and_b32 s{sB}, s{sPAIR}, 3")
    I(f"s_lshl_b32 s{sB}, s{sB}, 11")
    I(f"s_add_u32 s{sA}, s{sA}, s{sB}")
    I(f"s_and_b32 s{sB}, s{sSPLIT}, 15")
    I(f"s_lshl_b32 s{sB}, s{sB}, 7")
    I(f"s_add_u32 s{sA}, s{sA}, s{sB}")
    I(f"s_lshl_b32 s{sB}, s{sW}, 5")
    I(f"s_add_u32 s{sA}, s{sA}, s{sB}")
    I(f"s_add_u32 s{sA}, s{sA}, {OB0}")
    I(f"s_cmp_ge_u32 s{sSPLIT}, 16")
    I(f"s_cselect_b32 s{sA}, s{sA}, {OOB}")
    I(f"v_and_b32 v{t1}, 1, v{vLane}")
    I(f"v_lshlrev_b32 v{t1}, 4, v{t1}")
    I(f"v_lshrrev_b32 v{t2}, 5, v{vLane}")
    I(f"v_lshl_or_b32 v{t1}, v{t2}, 3, v{t1}")
    I(f"v_bfe_u32 v{t2}, v{vLane}, 4, 1")
    I(f"v_lshl_or_b32 v{t1}, v{t2}, 2, v{t1}")
    I(f"v_add_u32 v{t1}, s{sA}, v{t1}")
    I(f"v_and_b32 v{t2}, 14, v{vLane}")
    I(f"v_cmp_eq_u32 vcc, 0, v{t2}")
    I(f"v_cndmask_b32 v{vOBa}, v{vOOB}, v{t1}, vcc")
    M1 = T[12:16]
    for r in M1: I(f"v_mov_b32 v{r}, -1")
    VM(f"buffer_store_dwordx4 {vr(M1[0],4)}, v{vQPa}, {srd(sWS)}, 0 offen sc1", "clr")
    VM(f"buffer_store_dwordx4 {vr(M1[0],4)}, v{vOPa}, {srd(sWS)}, 0 offen sc1", "clr")
    VM(f"buffer_store_dwordx4 {vr(M1[0],4)}, v{vAPa}, {srd(sWS)}, 0 offen sc1", "clr")
    VM(f"buffer_store_dwordx2 {vr(M1[0],2)}, v{vMLa}, {srd(sWS)}, 0 offen sc1", "clr")
    VM(f"buffer_store_dword v{M1[0]}, v{vOBa}, {srd(sWS)}, 0 offen sc1", "clr")
    VM(f"buffer_store_dword v{M1[0]}, v{vTBa}, {srd(sWS)}, 0 offen sc1", "clr")
    stamp("clr_iss")
    RW = [S[24], S[32], W2[0]]
    I(f"s_mul_i32 s{sA}, s{sW}, 1792")
    I(f"v_lshlrev_b32 v{t0}, 4, v{vLane}")
    I(f"v_lshlrev_b32 v{t1}, 3, v{vLane}")
    I(f"v_lshlrev_b32 v{t2}, 2, v{vLane}")
    for r0, sr_ in zip(RW, (sW1, sB1, sW2)):
        VM(f"buffer_load_dwordx4 {vr(r0,4)}, v{t0}, {srd(sr_)}, s{sA} offen", "w")
        VM(f"buffer_load_dwordx2 {vr(r0+4,2)}, v{t1}, {srd(sr_)}, s{sA} offen offset:1024", "w")
        VM(f"buffer_load_dword v{r0+6}, v{t2}, {srd(sr_)}, s{sA} offen offset:1536", "w")
    I(f"v_mov_b32 v{t3}, 0")
    VM(f"buffer_load_ushort v{vB2}, v{t3}, {srd(sB2)}, 0 offen", "w")
    stamp("w_iss")
    emit(groups_upto(1 + cfg.npre))
    stamp("pre_iss")

    I(f"v_lshrrev_b32 v{t0}, 1, v{vN}")
    I(f"v_and_b32 v{t2}, 1, v{vN}")
    I(f"v_lshlrev_b32 v{t2}, 4, v{t2}")
    I(f"v_lshl_or_b32 v{t2}, v{vG}, 8, v{t2}")
    for par in range(2):
        I(f"v_xor_b32 v{t1}, v{t0}, v{vG}")
        if par: I(f"v_xor_b32 v{t1}, 4, v{t1}")
        I(f"v_lshl_add_u32 v{vVD[par]}, v{t1}, 5, v{t2}")
    I(f"v_lshrrev_b32 v{t0}, 2, v{vN}")
    I(f"v_lshl_add_u32 v{t0}, v{vG}, 2, v{t0}")
    I(f"v_and_b32 v{t1}, 3, v{vN}")
    I(f"v_lshlrev_b32 v{t1}, 3, v{t1}")
    I(f"v_add_u32 v{t1}, s{sRING}, v{t1}")
    I(f"v_lshl_add_u32 v{t2}, v{t0}, 8, v{t1}")
    I(f"v_and_b32 v{t3}, 7, v{t0}")
    for mt in range(8):
        I(f"v_xor_b32 v{t4}, {mt}, v{t3}")
        I(f"v_lshl_add_u32 v{vVR[mt]}, v{t4}, 5, v{t2}")
    I(f"v_lshl_add_u32 v{t2}, v{t0}, 7, v{t1}")
    I(f"v_bfe_u32 v{t3}, v{t0}, 1, 2")
    for mt in range(4):
        I(f"v_xor_b32 v{t4}, {mt}, v{t3}")
        I(f"v_lshl_add_u32 v{vWR[mt]}, v{t4}, 5, v{t2}")
    I(f"s_lshl_b32 s{sA}, s{sPAIR}, 2")
    I(f"s_add_u32 s{sA}, s{sA}, s{sW}")
    I(f"s_lshl_b32 s{sWO0}, s{sA}, 18")
    I(f"s_and_b32 s{sC}, s{sSPLIT}, 15")
    I(f"s_lshl_b32 s{sC}, s{sC}, 7")
    I(f"s_add_u32 s{sWO0}, s{sWO0}, s{sC}")
    I(f"s_cmp_lt_u32 s2, 128")
    I(f"s_cselect_b32 s{sA}, 0, {OOB}")
    I(f"v_or_b32 v{vWD2}, s{sA}, v{vWD2}")
    I(f"s_and_b32 s{sA}, s2, 0xfe")
    I(f"s_cmp_eq_u32 s{sA}, 128")
    I(f"s_mov_b32 s{sB}, {OOB}")
    I(f"s_cselect_b32 s{sA}, {TB0}, s{sB}")
    I(f"v_lshl_add_u32 v{vTG}, v{vTid}, 4, s{sA}")
    I(f"v_mov_b32 v{vK1}, 0x{f2u(K1):08x}")
    I(f"v_mov_b32 v{vK1+1}, 0x{f2u(K1):08x}")
    I(f"v_mov_b32 v{vONE}, 1.0")
    I(f"v_mov_b32 v{vONE+1}, 1.0")
    I(f"s_mov_b32 s{sK2}, 0x{f2u(K2):08x}")
    I(f"s_mov_b32 s{sK2+1}, 0x{f2u(K2):08x}")
    I(f"s_lshl_b32 s{sT0}, s2, 3")
    I(f"s_add_u32 s{sT0}, s{sT0}, {114 << 7}")
    I(f"s_lshl_b32 s{sT0}, s{sT0}, 16")
    for r in TACC: I(f"v_mov_b32 v{r}, 0")
    I(f"v_and_b32 v{t0}, 7, v{vN}")
    I(f"v_mul_u32_u24 v{t0}, {OSTR}, v{t0}")
    I(f"v_lshl_add_u32 v{t0}, v{vG}, 4, v{t0}")
    I(f"s_mul_i32 s{sA}, s{sW}, {8*OSTR}")
    I(f"s_add_u32 s{sA}, s{sA}, {ORED}")
    I(f"v_add_u32 v{vOW}, s{sA}, v{t0}")
    I(f"v_lshrrev_b32 v{t0}, 5, v{vTid}")
    I(f"v_mul_u32_u24 v{t0}, {OSTR}, v{t0}")
    I(f"v_and_b32 v{t1}, 31, v{vTid}")
    I(f"v_lshl_add_u32 v{t0}, v{t1}, 4, v{t0}")
    I(f"v_add_u32 v{vOR}, {ORED}, v{t0}")
    I(f"s_and_b32 s{sA}, s{sPAIR}, 3")
    I(f"s_lshl_b32 s{sA}, s{sA}, 1")
    I(f"s_lshr_b32 s{sB}, s{sPAIR}, 2")
    I(f"s_add_u32 s{sA}, s{sA}, s{sB}")
    I(f"s_lshl_b32 s{sA}, s{sA}, 14")
    I(f"s_add_u32 s{sA}, s{sA}, {QP0}")
    I(f"v_lshl_add_u32 v{vQG}, v{vTid}, 4, s{sA}")
    I(f"v_and_b32 v{t0}, 7, v{vN}")
    I(f"v_lshlrev_b32 v{t0}, 8, v{t0}")
    I(f"v_lshl_add_u32 v{t0}, v{vG}, 4, v{t0}")
    I(f"v_add_u32 v{vQB}, {QBF}, v{t0}")

    A.waitvm("x")
    stamp("x")

    def ln_x():
        XU = [S[48:64], T[16:32]]
        for b in range(2):
            for i in range(8):
                I(f"v_lshlrev_b32 v{XU[b][2*i]}, 16, v{XR[8*b+i]}")
                I(f"v_and_b32 v{XU[b][2*i+1]}, 0xffff0000, v{XR[8*b+i]}")
        sp = [T[8], T[10]]
        sm = [T[0], T[2]]; tm = [T[4], T[5]]
        for b in range(2):
            I(f"v_pk_add_f32 {vr(sp[b])}, {vr(XU[b][0])}, {vr(XU[b][2])}")
        for i in range(2, 8):
            for b in range(2):
                I(f"v_pk_add_f32 {vr(sp[b])}, {vr(sp[b])}, {vr(XU[b][2*i])}")
        for b in range(2): I(f"v_add_f32 v{sm[b]}, v{sp[b]}, v{sp[b]+1}")
        allreduce("add", sm, tm)
        for b in range(2): I(f"v_mul_f32 v{sm[b]}, 0x{f2u(1/1024):08x}, v{sm[b]}")
        ss = [T[6], T[7]]
        for i in range(8):
            for b in range(2):
                I(f"v_pk_add_f32 {vr(XU[b][2*i])}, {vr(XU[b][2*i])}, {vr(sm[b])} op_sel_hi:[1,0] neg_lo:[0,1] neg_hi:[0,1]")
        for b in range(2): I(f"v_pk_mul_f32 {vr(sp[b])}, {vr(XU[b][0])}, {vr(XU[b][0])}")
        for i in range(1, 8):
            for b in range(2):
                I(f"v_pk_fma_f32 {vr(sp[b])}, {vr(XU[b][2*i])}, {vr(XU[b][2*i])}, {vr(sp[b])}")
        for b in range(2): I(f"v_add_f32 v{ss[b]}, v{sp[b]}, v{sp[b]+1}")
        allreduce("add", ss, tm)
        for b in range(2): I(f"v_mul_f32 v{ss[b]}, 0x{f2u(1/1024):08x}, v{ss[b]}")
        for b in range(2): rnd(sm[b])
        for b in range(2): rnd(ss[b])
        for b in range(2): I(f"v_add_f32 v{ss[b]}, 0x{f2u(1e-5):08x}, v{ss[b]}")
        for b in range(2): rnd(ss[b])
        for b in range(2): I(f"v_sqrt_f32 v{ss[b]}, v{ss[b]}")
        for b in range(2): rnd(ss[b])
        for b in range(2): I(f"v_rcp_f32 v{ss[b]}, v{ss[b]}")
        I(f"v_and_b32 v{T[4]}, 1, v{vN}")
        I(f"v_cmp_eq_u32 vcc, 1, v{T[4]}")
        I(f"v_cndmask_b32 v{T[8]}, v{sm[0]}, v{sm[1]}, vcc")
        I(f"v_cndmask_b32 v{T[10]}, v{ss[0]}, v{ss[1]}, vcc")
        XE = T[16:32]
        for i in range(8):
            I(f"v_lshlrev_b32 v{XE[2*i]}, 16, v{XF[i]}")
            I(f"v_and_b32 v{XE[2*i+1]}, 0xffff0000, v{XF[i]}")
        for i in range(8): I(f"v_pk_add_f32 {vr(XE[2*i])}, {vr(XE[2*i])}, {vr(T[8])} op_sel_hi:[1,0] neg_lo:[0,1] neg_hi:[0,1]")
        for i in range(16): rnd(XE[i])
        for i in range(8): I(f"v_pk_mul_f32 {vr(XE[2*i])}, {vr(XE[2*i])}, {vr(T[10])} op_sel_hi:[1,0]")
        for i in range(8): I(f"v_cvt_pk_bf16_f32 v{XF[i]}, v{XE[2*i]}, v{XE[2*i+1]}")

    A.merge(A.capture(ln_x), groups_upto(1 + cfg.npre + cfg.nln), stop=0.9)
    stamp("ln")
    A.waitvm("it1")
    stamp("wq")
    WA = T[16:48]
    for kk in range(2):
        for mt in range(4):
            for h in range(2):
                I(f"ds_read_b64_tr_b16 {vr(WA[(kk*4+mt)*4+2*h],2)}, v{vWR[mt]} offset:{slot_off(kk)+h*2048}")
    A.D("reads 0"); A.D("reads 1")
    def xw_addr():
        I(f"v_lshlrev_b32 v{T[0]}, 8, v{vN}")
        I(f"v_lshl_add_u32 v{T[0]}, v{vG}, 4, v{T[0]}")
        I(f"s_lshl_b32 s{sA}, s{sW}, 9")
        I(f"s_add_u32 s{sA}, s{sA}, {QRED}")
        I(f"v_add_u32 v{T[0]}, s{sA}, v{T[0]}")
        I(f"v_and_b32 v{T[1]}, 7, v{vLane}")
        I(f"v_lshlrev_b32 v{T[1]}, 4, v{T[1]}")
        I(f"s_lshl_b32 s{sA}, s{sW}, 7")
        I(f"s_add_u32 s{sA}, s{sA}, {QRED}")
        I(f"v_add_u32 v{T[1]}, s{sA}, v{T[1]}")
    xw_addr()
    I("s_waitcnt lgkmcnt(0)")
    QD = S[48:64]
    for kk in range(2):
        for mt in range(4):
            c = "0" if kk == 0 else vr(QD[4*mt], 4)
            I(f"v_mfma_f32_16x16x32_bf16 {vr(QD[4*mt],4)}, {vr(WA[(kk*4+mt)*4],4)}, {vr(XF[4*kk],4)}, {c}")
    emit(groups_upto(1 + DK[0]))

    def cross_wave_write(D):
        I(f"s_mov_b32 exec_lo, 0x00030003")
        I(f"s_mov_b32 exec_hi, 0x00030003")
        for mt in range(4):
            I(f"ds_write_b128 v{T[0]}, {vr(D[4*mt],4)} offset:{mt*64}")
        I("s_mov_b64 exec, -1")

    def cross_wave_sum(dst):
        R = T[4:20]
        for k in range(4):
            I(f"ds_read_b128 {vr(R[4*k],4)}, v{T[1]} offset:{k*512}")
        I("s_waitcnt lgkmcnt(0)")
        I(f"v_pk_add_f32 {vr(R[0])}, {vr(R[0])}, {vr(R[4])}")
        I(f"v_pk_add_f32 {vr(R[2])}, {vr(R[2])}, {vr(R[6])}")
        I(f"v_pk_add_f32 {vr(R[8])}, {vr(R[8])}, {vr(R[12])}")
        I(f"v_pk_add_f32 {vr(R[10])}, {vr(R[10])}, {vr(R[14])}")
        I(f"v_pk_add_f32 {vr(dst)}, {vr(R[0])}, {vr(R[8])}")
        I(f"v_pk_add_f32 {vr(dst+2)}, {vr(R[2])}, {vr(R[10])}")

    cross_wave_write(QD)
    I(f"s_and_b32 s{sA}, s2, 15")
    I(f"s_lshl_b32 s{sA}, s{sA}, 2")
    I(f"s_cmp_eq_u32 s{sW}, 0")
    I(f"s_cselect_b32 s{sA}, s{sA}, 0x1000")
    I(f"v_mov_b32 v{T[2]}, 0x1000")
    I(f"v_mov_b32 v{T[3]}, s{sA}")
    I(f"v_cmp_eq_u32 vcc, 0, v{vLane}")
    I(f"v_cndmask_b32 v{T[2]}, v{T[2]}, v{T[3]}, vcc")
    I(f"v_mov_b32 v{T[3]}, 1")
    A.waitvm("clr", " lgkmcnt(0)")
    I("s_barrier")
    VM(f"buffer_atomic_add v{T[3]}, v{T[2]}, {srd(sDBG)}, 0 offen sc1", "cnt")
    QS = T[24]
    cross_wave_sum(QS)
    VM(f"buffer_store_dwordx4 {vr(QS,4)}, v{vQPa}, {srd(sWS)}, 0 offen sc1", "qpub")
    stamp("qpub")

    QGR = T[44:60]
    QF = O[0:16]
    PK = O[16:30]
    PV_ = S[48:62]
    TGR = S[32:48]

    maxinit = [False]
    def qk_mfma(ts):
        for j in range(4):
            for t in ts:
                c = "0" if j == 0 else vr(S[4*t], 4)
                I(f"v_mfma_f32_16x16x32_bf16 {vr(S[4*t],4)}, {ar(16*t+4*j,4)}, {vr(QF[4*j],4)}, {c}")

    def qk_post(ts):
        regs = [S[4*t+r] for t in ts for r in range(4)]
        for r in regs: rnd(r)
        for k in range(0, len(regs), 2):
            I(f"v_pk_mul_f32 {vr(regs[k])}, s[{sSC}:{sSC+1}], {vr(regs[k])} op_sel_hi:[0,1]")
        for r in regs: rnd(r)
        k = 0
        if not maxinit[0]:
            I(f"v_max_f32 v{vM}, v{regs[0]}, v{regs[1]}")
            k = 2; maxinit[0] = True
        while k < len(regs):
            I(f"v_max3_f32 v{vM}, v{vM}, v{regs[k]}, v{regs[k+1]}")
            k += 2

    def qk_blocks(ts):
        ts = list(ts)
        prev = None
        for u in range(0, len(ts), 2):
            grp = ts[u:u+2]
            mf = A.capture(lambda: qk_mfma(grp))
            if prev is None:
                A.L.extend(mf)
            else:
                A.merge(A.capture(lambda: qk_post(prev)), [[x] for x in mf], stop=0.9)
            prev = grp
        qk_post(prev)

    sSC = sCH + 2
    qk_done = [0]
    chk_eval = cfg.chk_at + cfg.chk_gap
    assert chk_eval < cfg.quse_at
    for t in range(16):
        it = 2 + t
        nolg = cfg.chk_at < t < chk_eval
        A.waitvm(f"it{it}", "" if nolg else " lgkmcnt(0)")
        stamp(f"k{t}")
        if t == chk_eval:
            for k in range(1, 16):
                I(f"s_add_u32 s{sCH}, s{sCH}, s{sCH+k}")
            ok = A.label("chk_ok"); lp = A.label("chk_lp")
            I(f"s_cmp_eq_u32 s{sCH}, 256")
            if cfg.profile: I(f"s_mov_b32 s{sCH+1}, 0")
            I(f"s_cbranch_scc1 {ok}")
            if cfg.profile: I(f"s_mov_b32 s{sCH+1}, s{sCH}")
            I(f"s_mov_b32 s{sCNT}, {cfg.limit}")
            I(f"v_lshlrev_b32 v{T[40]}, 2, v{vLane}")
            I("s_mov_b32 exec_lo, 0xffff")
            I("s_mov_b32 exec_hi, 0")
            I(f"{lp}:")
            U(f"buffer_load_dword v{T[41]}, v{T[40]}, {srd(sDBG)}, 0 offen sc1")
            I("s_waitcnt vmcnt(0)")
            I(f"v_cmp_ne_u32 vcc, 16, v{T[41]}")
            I(f"s_cbranch_vccz {ok}_r")
            I(f"s_sub_u32 s{sCNT}, s{sCNT}, 1")
            I(f"s_cmp_lg_u32 s{sCNT}, 0")
            I(f"s_cbranch_scc1 {lp}")
            I(f"{ok}_r:")
            I("s_mov_b64 exec, -1")
            I(f"{ok}:")
            I(f"s_mov_b32 s{sSC}, 0x{f2u(SCALE):08x}")
            for k in range(4):
                I(f"s_mov_b32 s{sB}, {k*4096}")
                VM(f"buffer_load_dwordx4 {vr(QGR[4*k],4)}, v{vQG}, {srd(sWS)}, s{sB} offen sc1", "qg")
            stamp("qg_issue")
        for j in range(4):
            I(f"ds_read_b128 {ar(16*t+4*j,4)}, v{vKR[j]} offset:{slot_off(it)}")
        A.D(f"reads {it}")
        if t == cfg.chk_at:
            I(f"s_load_dwordx16 s[{sCH}:{sCH+15}], s[{sDBG}:{sDBG+1}], 0")
        G = groups_upto(it + DK[t])
        if t == cfg.quse_at:
            emit(G)
            A.waitvm("qg")
            stamp("qg_land")
            ok = A.label("qg_ok")
            any_sentinel(QGR, T[0])
            I(f"v_cmp_eq_u32 vcc, -1, v{T[0]}")
            I(f"s_cbranch_vccz {ok}")
            lds = []
            for k in range(4):
                lds.append(f"s_mov_b32 s{sB}, {k*4096}")
                lds.append(f"buffer_load_dwordx4 {vr(QGR[4*k],4)}, v{vQG}, {srd(sWS)}, s{sB} offen sc1")
            poll(lds, QGR, T[0], "qg_poll", drained=False)
            I(f"{ok}:")
            I(f"v_pk_add_f32 {vr(QGR[0])}, {vr(QGR[0])}, {vr(QGR[4])}")
            I(f"v_pk_add_f32 {vr(QGR[2])}, {vr(QGR[2])}, {vr(QGR[6])}")
            I(f"v_pk_add_f32 {vr(QGR[8])}, {vr(QGR[8])}, {vr(QGR[12])}")
            I(f"v_pk_add_f32 {vr(QGR[10])}, {vr(QGR[10])}, {vr(QGR[14])}")
            I(f"v_pk_add_f32 {vr(QGR[0])}, {vr(QGR[0])}, {vr(QGR[8])}")
            I(f"v_pk_add_f32 {vr(QGR[2])}, {vr(QGR[2])}, {vr(QGR[10])}")
            I(f"v_cvt_pk_bf16_f32 v{QGR[4]}, v{QGR[0]}, v{QGR[1]}")
            I(f"v_cvt_pk_bf16_f32 v{QGR[5]}, v{QGR[2]}, v{QGR[3]}")
            I(f"v_lshlrev_b32 v{T[0]}, 3, v{vTid}")
            I(f"v_add_u32 v{T[0]}, {QBF}, v{T[0]}")
            I(f"ds_write_b64 v{T[0]}, {vr(QGR[4],2)}")
            I("s_waitcnt lgkmcnt(0)")
            I("s_barrier")
            for j in range(4):
                I(f"ds_read_b128 {vr(QF[4*j],4)}, v{vQB} offset:{j*64}")
            I("s_waitcnt lgkmcnt(0)")
            stamp("q_ready")
            qk_blocks(range(0, t + 1))
            qk_done[0] = t + 1
            continue
        def filler():
            if t == 0:
                A.waitvm("w")
                for (r0, dst) in zip(RW[:2], (W1, B1)):
                    for i in range(7):
                        I(f"v_lshlrev_b32 v{dst[2*i]}, 16, v{r0+i}")
                        I(f"v_and_b32 v{dst[2*i+1]}, 0xffff0000, v{r0+i}")
                I(f"v_lshlrev_b32 v{vB2}, 16, v{vB2}")
            for _ in range(cfg.tab.count(f"k{t}")): table_phase(PK)
        F = A.capture(filler)
        pend = list(range(qk_done[0], t)) if t > cfg.quse_at else []
        if pend:
            G = G + [[x] for x in A.capture(lambda: qk_mfma(pend))]
        A.merge(F, G, stop=cfg.dma_stop)
        if pend:
            qk_post(pend); qk_done[0] = t
    I("s_waitcnt lgkmcnt(0)")
    emit(groups_upto(25))
    if qk_done[0] < 16:
        qk_blocks(range(qk_done[0], 16))
    stamp("k_done")
    assert tabn[0] % 2 == 0, "a +/- table pair must not straddle the softmax"
    allreduce("max", [vM], [T[0]], lo_steps=())
    I(f"v_lshlrev_b32 v{T[1]}, 2, v{vN}")
    I(f"s_lshl_b32 s{sA}, s{sW}, 6")
    I(f"s_add_u32 s{sA}, s{sA}, {MX}")
    I(f"v_add_u32 v{T[2]}, s{sA}, v{T[1]}")
    I(f"ds_write_b32 v{T[2]}, v{vM}")
    I(f"v_add_u32 v{T[1]}, {MX}, v{T[1]}")
    I("s_waitcnt lgkmcnt(0)")
    I("s_barrier")
    for k in range(4):
        I(f"ds_read_b32 v{T[4+k]}, v{T[1]} offset:{k*64}")
    I(f"s_mov_b32 s{sSC}, 0x{f2u(LOG2E):08x}")
    I("s_waitcnt lgkmcnt(0)")
    I(f"v_max3_f32 v{vM}, v{T[4]}, v{T[5]}, v{T[6]}")
    I(f"v_max_f32 v{vM}, v{vM}, v{T[7]}")
    I(f"v_mul_f32 v{T[0]}, 0x{f2u(-LOG2E):08x}, v{vM}")
    P = S[0:32]
    LA = T[2]
    for c in range(8):
        E = T[4:12]
        src = S[8*c:8*c+8]
        for i in range(4): I(f"v_pk_fma_f32 {vr(E[2*i])}, {vr(src[2*i])}, s[{sSC}:{sSC+1}], {vr(T[0])} op_sel_hi:[1,0,0]")
        for i in range(8): I(f"v_exp_f32 v{E[i]}, v{E[i]}")
        for i in range(4): I(f"v_cvt_pk_bf16_f32 v{P[4*c+i]}, v{E[2*i]}, v{E[2*i+1]}")
        I(f"v_pk_add_f32 {vr(E[0])}, {vr(E[0])}, {vr(E[2])}")
        I(f"v_pk_add_f32 {vr(E[4])}, {vr(E[4])}, {vr(E[6])}")
        if c == 0:
            I(f"v_pk_add_f32 {vr(LA)}, {vr(E[0])}, {vr(E[4])}")
        else:
            I(f"v_pk_add_f32 {vr(E[0])}, {vr(E[0])}, {vr(E[4])}")
            I(f"v_pk_add_f32 {vr(LA)}, {vr(LA)}, {vr(E[0])}")
    I(f"v_add_f32 v{vL}, v{LA}, v{LA+1}")
    allreduce("add", [vL], [T[1]], lo_steps=())
    I(f"v_lshlrev_b32 v{T[1]}, 2, v{vN}")
    I(f"s_lshl_b32 s{sA}, s{sW}, 6")
    I(f"s_add_u32 s{sA}, s{sA}, {LS}")
    I(f"v_add_u32 v{T[2]}, s{sA}, v{T[1]}")
    I(f"ds_write_b32 v{T[2]}, v{vL}")
    stamp("p_done")

    def pv_mfma(c):
        ab = 128 + 32 * (c & 1)
        for mt in range(8):
            cc = "0" if c == 0 else vr(O[4*mt], 4)
            I(f"v_mfma_f32_16x16x32_bf16 {vr(O[4*mt],4)}, {ar(ab+4*mt,4)}, {vr(P[4*c],4)}, {cc}")

    for v in range(16):
        it = 18 + v
        A.waitvm(f"it{it}", " lgkmcnt(0)")
        stamp(f"v{v}")
        ab = 128 + 32 * ((v >> 1) & 1)
        for mt in range(8):
            I(f"ds_read_b64_tr_b16 {ar(ab+4*mt+2*(v&1),2)}, v{vVR[mt]} offset:{slot_off(it)}")
        A.D(f"reads {it}")
        G = groups_upto(it + DV[v])
        for k, wv in enumerate(cfg.wo_at):
            if wv == v:
                assert issued[0] == 34 + k, (issued[0], k)
                G += groups_upto(34 + k, last=37)
        if v == cfg.tbg_at:
            def tg():
                for k in range(4):
                    I(f"s_mov_b32 s{sB}, {k*4096}")
                    VM(f"buffer_load_dwordx4 {vr(TGR[4*k],4)}, v{vTG}, {srd(sWS)}, s{sB} offen sc1", "tg")
            G.append(A.capture(tg))
        F = A.capture(lambda: [table_phase(PV_) for _ in range(cfg.tab.count(f"v{v}"))])
        if v >= 2 and not (v & 1):
            mf = [[x] for x in A.capture(lambda: pv_mfma(v // 2 - 1))]
            mix = []
            while G or mf:
                if G: mix.append(G.pop(0))
                if mf: mix.append(mf.pop(0))
                if mf: mix.append(mf.pop(0))
            G = mix
        A.merge(F, G, stop=cfg.dma_stop)
        if v == cfg.b4_at:
            assert tabn[0] == 16, tabn[0]
            a = TACC
            for i in range(8): I(f"v_permlane32_swap_b32 v{a[i]}, v{a[i+8]}")
            for i in range(8): I(f"v_add_f32 v{a[i]}, v{a[i]}, v{a[i+8]}")
            for i in range(4): I(f"v_permlane16_swap_b32 v{a[i]}, v{a[i+4]}")
            for i in range(4): I(f"v_add_f32 v{a[i]}, v{a[i]}, v{a[i+4]}")
            allreduce("add", a[0:4], None, rows=False)
            I(f"v_lshlrev_b32 v{T[0]}, 4, v{vG}")
            I(f"s_lshl_b32 s{sA}, s{sW}, 6")
            I(f"s_add_u32 s{sA}, s{sA}, {TRED}")
            I(f"v_add_u32 v{T[0]}, s{sA}, v{T[0]}")
            I(f"ds_write_b128 v{T[0]}, {vr(a[0],4)}")
            I("s_waitcnt lgkmcnt(0)")
            I("s_barrier")
            I(f"v_lshlrev_b32 v{T[0]}, 2, v{vN}")
            I(f"v_add_u32 v{T[1]}, {TRED}, v{T[0]}")
            I(f"v_add_u32 v{T[0]}, {LS}, v{T[0]}")
            for k in range(4):
                I(f"ds_read_b32 v{T[4+k]}, v{T[1]} offset:{k*64}")
                I(f"ds_read_b32 v{T[8+k]}, v{T[0]} offset:{k*64}")
            I("s_waitcnt lgkmcnt(0)")
            for b0 in (4, 8):
                I(f"v_add_f32 v{T[b0]}, v{T[b0]}, v{T[b0+1]}")
                I(f"v_add_f32 v{T[b0+2]}, v{T[b0+2]}, v{T[b0+3]}")
                I(f"v_add_f32 v{T[b0]}, v{T[b0]}, v{T[b0+2]}")
            rnd(T[4])
            I(f"v_add_f32 v{T[4]}, v{T[4]}, v{vB2}")
            rnd(T[4])
            VM(f"buffer_store_dword v{T[4]}, v{vTBa}, {srd(sWS)}, 0 offen sc1", "tpub")
            I(f"v_mov_b32 v{T[12]}, v{vM}")
            I(f"v_mov_b32 v{T[13]}, v{T[8]}")
            VM(f"buffer_store_dwordx2 {vr(T[12],2)}, v{vMLa}, {srd(sWS)}, 0 offen sc1", "mlpub")
    I("s_waitcnt lgkmcnt(0)")
    pv_mfma(7)
    stamp("v_done")
    I("s_mov_b32 exec_lo, 0x00ff00ff")
    I("s_mov_b32 exec_hi, 0x00ff00ff")
    for mt in range(8):
        I(f"ds_write_b128 v{vOW}, {vr(O[4*mt],4)} offset:{mt*64}")
    I("s_mov_b64 exec, -1")
    I("s_waitcnt lgkmcnt(0)")
    I("s_barrier")
    R = T[4:20]
    for k in range(4):
        I(f"ds_read_b128 {vr(R[4*k],4)}, v{vOR} offset:{k*8*OSTR}")
    I("s_waitcnt lgkmcnt(0)")
    I(f"v_pk_add_f32 {vr(R[0])}, {vr(R[0])}, {vr(R[4])}")
    I(f"v_pk_add_f32 {vr(R[2])}, {vr(R[2])}, {vr(R[6])}")
    I(f"v_pk_add_f32 {vr(R[8])}, {vr(R[8])}, {vr(R[12])}")
    I(f"v_pk_add_f32 {vr(R[10])}, {vr(R[10])}, {vr(R[14])}")
    I(f"v_pk_add_f32 {vr(R[0])}, {vr(R[0])}, {vr(R[8])}")
    I(f"v_pk_add_f32 {vr(R[2])}, {vr(R[2])}, {vr(R[10])}")
    VM(f"buffer_store_dwordx4 {vr(R[0],4)}, v{vOPa}, {srd(sWS)}, 0 offen sc1", "opub")
    stamp("opub")

    I("s_cmp_lt_u32 s2, 128")
    I("s_cbranch_scc1 L_h2")
    A.D("save tail")
    GA, GM = T[0], T[1]
    I(f"s_and_b32 s{sA}, s{sSPLIT}, 15")
    I(f"s_lshl_b32 s{sB}, s{sA}, 2")
    I(f"s_add_u32 s{sB}, s{sB}, s{sW}")
    I(f"s_lshl_b32 s{sB}, s{sB}, 11")
    I(f"s_lshl_b32 s{sC}, s{sPAIR}, 17")
    I(f"s_add_u32 s{sB}, s{sB}, s{sC}")
    I(f"s_add_u32 s{sB}, s{sB}, {OP0}")
    I(f"v_lshl_add_u32 v{GA}, v{vLane}, 5, s{sB}")
    I(f"s_lshr_b32 s{sA}, s{sA}, 1")
    I(f"s_lshl_b32 s{sC}, s{sPAIR}, 3")
    I(f"s_add_u32 s{sA}, s{sA}, s{sC}")
    I(f"s_lshl_b32 s{sA}, s{sA}, 8")
    I(f"s_add_u32 s{sA}, s{sA}, {ML0}")
    I(f"v_lshrrev_b32 v{GM}, 1, v{vLane}")
    I(f"v_lshl_add_u32 v{GM}, v{GM}, 3, s{sA}")
    D8 = T[4:12]; DM = T[12:14]
    poll([f"buffer_load_dwordx4 {vr(D8[0],4)}, v{GA}, {srd(sWS)}, 0 offen sc1",
          f"buffer_load_dwordx4 {vr(D8[4],4)}, v{GA}, {srd(sWS)}, 0 offen offset:16 sc1",
          f"buffer_load_dwordx2 {vr(DM[0],2)}, v{GM}, {srd(sWS)}, 0 offen sc1"], D8 + DM, T[2], "h1_poll")
    stamp("h1_got")
    mx, tt = T[14], T[15]
    I(f"v_mov_b32 v{mx}, v{DM[0]}")
    allreduce("max", [mx], [tt], lo_steps=(2, 4, 8))
    I(f"v_sub_f32 v{tt}, v{DM[0]}, v{mx}")
    I(f"v_mul_f32 v{tt}, 0x{f2u(LOG2E):08x}, v{tt}")
    I(f"v_exp_f32 v{tt}, v{tt}")
    I(f"v_mul_f32 v{DM[1]}, v{DM[1]}, v{tt}")
    for r in D8: I(f"v_mul_f32 v{r}, v{r}, v{tt}")
    for i in range(4): I(f"v_permlane32_swap_b32 v{D8[i]}, v{D8[i+4]}")
    for i in range(4): I(f"v_add_f32 v{D8[i]}, v{D8[i]}, v{D8[i+4]}")
    for i in range(2): I(f"v_permlane16_swap_b32 v{D8[i]}, v{D8[i+2]}")
    for i in range(2): I(f"v_add_f32 v{D8[i]}, v{D8[i]}, v{D8[i+2]}")
    allreduce("add", [D8[0], D8[1]], None, lo_steps=(2, 4, 8), rows=False)
    allreduce("add", [DM[1]], [tt], lo_steps=(2, 4, 8))
    I(f"v_rcp_f32 v{tt}, v{DM[1]}")
    I(f"v_mul_f32 v{D8[0]}, v{D8[0]}, v{tt}")
    I(f"v_mul_f32 v{D8[1]}, v{D8[1]}, v{tt}")
    I(f"v_cvt_pk_bf16_f32 v{D8[0]}, v{D8[0]}, v{D8[1]}")
    VM(f"buffer_store_dword v{D8[0]}, v{vOBa}, {srd(sWS)}, 0 offen sc1", "obpub")
    stamp("h1_pub")
    I("s_and_b32 s%d, s2, 0xfe" % sA)
    I(f"s_cmp_eq_u32 s{sA}, 128")
    I("s_cbranch_scc1 L_fin")
    I("s_branch L_exit")

    I("L_h2:")
    A.D("restore tail")
    I(f"s_lshl_b32 s{sA}, s{sPAIR}, 2")
    I(f"s_add_u32 s{sA}, s{sA}, s{sW}")
    I(f"s_lshl_b32 s{sA}, s{sA}, 8")
    I(f"s_add_u32 s{sA}, s{sA}, {OB0}")
    I(f"v_lshrrev_b32 v{T[40]}, 5, v{vLane}")
    I(f"v_lshlrev_b32 v{T[40]}, 13, v{T[40]}")
    I(f"v_and_b32 v{T[41]}, 31, v{vLane}")
    I(f"v_lshl_add_u32 v{T[40]}, v{T[41]}, 3, v{T[40]}")
    I(f"v_add_u32 v{T[40]}, s{sA}, v{T[40]}")
    I(f"v_lshrrev_b32 v{T[42]}, 5, v{vLane}")
    I(f"v_lshlrev_b32 v{T[42]}, 8, v{T[42]}")
    I(f"v_lshrrev_b32 v{T[43]}, 3, v{T[41]}")
    I(f"v_lshl_or_b32 v{T[42]}, v{T[43]}, 6, v{T[42]}")
    I(f"v_and_b32 v{T[43]}, 3, v{T[41]}")
    I(f"v_lshl_or_b32 v{T[42]}, v{T[43]}, 4, v{T[42]}")
    I(f"v_bfe_u32 v{T[43]}, v{T[41]}, 2, 1")
    I(f"v_lshl_or_b32 v{T[42]}, v{T[43]}, 3, v{T[42]}")
    I(f"s_lshl_b32 s{sA}, s{sW}, 9")
    I(f"s_add_u32 s{sA}, s{sA}, {OST}")
    I(f"v_add_u32 v{T[42]}, s{sA}, v{T[42]}")
    I(f"v_and_b32 v{T[43]}, 1, v{vN}")
    I(f"v_lshlrev_b32 v{T[43]}, 8, v{T[43]}")
    I(f"v_lshl_or_b32 v{T[43]}, v{vG}, 4, v{T[43]}")
    I(f"v_add_u32 v{T[43]}, s{sA}, v{T[43]}")
    xw_addr()
    for blk in range(4):
        it = 34 + blk
        A.waitvm(f"it{it}")
        for mt in range(4):
            for h in range(2):
                I(f"ds_read_b64_tr_b16 {ar(blk*16+mt*4+2*h,2)}, v{vWR[mt]} offset:{slot_off(it)+h*2048}")
    stamp("wo_done")
    OG = T[44:46]
    poll([f"buffer_load_dwordx2 {vr(OG[0],2)}, v{T[40]}, {srd(sWS)}, 0 offen sc1"], OG, T[2], "h2_poll")
    stamp("h2_got")
    I(f"ds_write_b64 v{T[42]}, {vr(OG[0],2)}")
    I("s_waitcnt lgkmcnt(0)")
    OF = S[0:16]
    for blk in range(4):
        I(f"ds_read_b128 {vr(OF[4*blk],4)}, v{T[43]} offset:{blk*64}")
    AD = S[48:64]
    for blk in range(4):
        I(f"s_waitcnt lgkmcnt({3-blk})")
        for mt in range(4):
            c = "0" if blk == 0 else vr(AD[4*mt], 4)
            I(f"v_mfma_f32_16x16x32_bf16 {vr(AD[4*mt],4)}, {ar(blk*16+mt*4,4)}, {vr(OF[4*blk],4)}, {c}")
    cross_wave_write(AD)
    I("s_waitcnt lgkmcnt(0)")
    I("s_barrier")
    cross_wave_sum(QS)
    VM(f"buffer_store_dwordx4 {vr(QS,4)}, v{vAPa}, {srd(sWS)}, 0 offen sc1", "appub")
    stamp("h2_pub")
    I("s_branch L_exit")

    I("L_fin:")
    A.D("drained")
    XA = T[40]; XV = T[42:44]; GA = T[41]
    I(f"s_and_b32 s{sD}, s2, 1")
    I(f"s_lshl_b32 s{sA}, s{sD}, 11")
    I(f"v_lshl_add_u32 v{XA}, v{vTid}, 3, s{sA}")
    U(f"buffer_load_dwordx2 {vr(XV[0],2)}, v{XA}, {srd(sX)}, 0 offen")
    I(f"v_lshlrev_b32 v{GA}, 4, v{vTid}")
    tb_ok = A.label("tb_ok")
    any_sentinel(TGR, T[2])
    I(f"v_cmp_eq_u32 vcc, -1, v{T[2]}")
    I(f"s_cbranch_vccz {tb_ok}")
    lds = []
    for k in range(4):
        lds.append(f"s_mov_b32 s{sB}, {k*4096}")
        lds.append(f"buffer_load_dwordx4 {vr(TGR[4*k],4)}, v{vTG}, {srd(sWS)}, s{sB} offen sc1")
    poll(lds, TGR, T[2], "tb_poll", drained=False)
    I(f"{tb_ok}:")
    I("s_barrier")
    for k in range(4):
        I(f"ds_write_b128 v{GA}, {vr(TGR[4*k],4)} offset:{TBL+k*4096}")
    I(f"v_mov_b32 v{T[0]}, {FBN}")
    I(f"v_mov_b32 v{T[1]}, 0")
    I(f"ds_write_b32 v{T[0]}, v{T[1]}")
    stamp("tb_got")
    I(f"s_lshl_b32 s{sA}, s{sD}, 15")
    I(f"s_add_u32 s{sA}, s{sA}, {AP0}")
    I(f"v_add_u32 v{T[44]}, s{sA}, v{GA}")
    AG = S[0:32]
    lds = []
    for k in range(8):
        lds.append(f"s_mov_b32 s{sB}, {k*4096}")
        lds.append(f"buffer_load_dwordx4 {vr(AG[4*k],4)}, v{T[44]}, {srd(sWS)}, s{sB} offen sc1")
    poll(lds, AG, T[2], "ap_poll")
    stamp("ap_got")
    H = S[32:36]; X4 = S[36:40]; Y = S[40:44]
    for st_ in (16, 8, 4):
        for r in range(0, st_, 2):
            I(f"v_pk_add_f32 {vr(AG[r])}, {vr(AG[r])}, {vr(AG[r+st_])}")
    I(f"v_lshlrev_b32 v{X4[0]}, 16, v{XV[0]}")
    I(f"v_and_b32 v{X4[1]}, 0xffff0000, v{XV[0]}")
    I(f"v_lshlrev_b32 v{X4[2]}, 16, v{XV[1]}")
    I(f"v_and_b32 v{X4[3]}, 0xffff0000, v{XV[1]}")
    for r in range(4): rnd(AG[r])
    for r in (0, 2): I(f"v_pk_add_f32 {vr(H[r])}, {vr(AG[r])}, {vr(X4[r])}")
    for r in range(4): rnd(H[r])

    def ln_finish(mean, var, src, dst):
        rnd(mean); rnd(var)
        I(f"v_add_f32 v{var}, 0x{f2u(1e-5):08x}, v{var}")
        rnd(var)
        I(f"v_sqrt_f32 v{var}, v{var}")
        rnd(var)
        I(f"v_rcp_f32 v{var}, v{var}")
        for r in range(4): I(f"v_sub_f32 v{dst[r]}, v{src[r]}, v{mean}")
        for r in range(4): rnd(dst[r])
        for r in range(4): I(f"v_mul_f32 v{dst[r]}, v{dst[r]}, v{var}")
        for r in range(4): rnd(dst[r])

    s1, s2, tA, tB = T[0], T[1], T[2], T[3]
    I(f"v_add_f32 v{s1}, v{H[0]}, v{H[1]}")
    I(f"v_add_f32 v{tA}, v{H[2]}, v{H[3]}")
    I(f"v_add_f32 v{s1}, v{s1}, v{tA}")
    allreduce("add", [s1], [tA])
    I(f"v_mul_f32 v{s1}, 0x{f2u(1/256):08x}, v{s1}")
    for r in range(4): I(f"v_sub_f32 v{Y[r]}, v{H[r]}, v{s1}")
    I(f"v_mul_f32 v{s2}, v{Y[0]}, v{Y[0]}")
    for r in range(1, 4): I(f"v_fmac_f32 v{s2}, v{Y[r]}, v{Y[r]}")
    allreduce("add", [s2], [tA])
    I(f"s_lshl_b32 s{sA}, s{sW}, 3")
    I(f"s_add_u32 s{sA}, s{sA}, {STAT}")
    I(f"v_mov_b32 v{tA}, s{sA}")
    I(f"ds_write_b64 v{tA}, {vr(s1,2)}")
    I("s_waitcnt lgkmcnt(0)")
    I("s_barrier")
    I(f"v_mov_b32 v{tA}, {STAT}")
    ST = T[4:12]
    I(f"ds_read_b128 {vr(ST[0],4)}, v{tA}")
    I(f"ds_read_b128 {vr(ST[4],4)}, v{tA} offset:16")
    I("s_waitcnt lgkmcnt(0)")
    mean, var = T[12], T[13]
    I(f"v_add_f32 v{mean}, v{ST[0]}, v{ST[2]}")
    I(f"v_add_f32 v{tA}, v{ST[4]}, v{ST[6]}")
    I(f"v_add_f32 v{mean}, v{mean}, v{tA}")
    I(f"v_mul_f32 v{mean}, 0x{f2u(0.25):08x}, v{mean}")
    I(f"v_add_f32 v{var}, v{ST[1]}, v{ST[3]}")
    I(f"v_add_f32 v{tA}, v{ST[5]}, v{ST[7]}")
    I(f"v_add_f32 v{var}, v{var}, v{tA}")
    for k in (0, 2, 4, 6): I(f"v_sub_f32 v{ST[k]}, v{ST[k]}, v{mean}")
    I(f"v_mul_f32 v{tA}, v{ST[0]}, v{ST[0]}")
    for k in (2, 4, 6): I(f"v_fmac_f32 v{tA}, v{ST[k]}, v{ST[k]}")
    I(f"v_fmamk_f32 v{var}, v{tA}, 0x{f2u(256.0):08x}, v{var}")
    I(f"v_mul_f32 v{var}, 0x{f2u(1/1024):08x}, v{var}")
    H1 = S[44:48]
    ln_finish(mean, var, H, H1)
    I(f"v_add_f32 v{s1}, v{H1[0]}, v{H1[1]}")
    I(f"v_add_f32 v{tA}, v{H1[2]}, v{H1[3]}")
    I(f"v_mul_f32 v{s2}, v{H1[0]}, v{H1[0]}")
    I(f"v_add_f32 v{s1}, v{s1}, v{tA}")
    for r in range(1, 4): I(f"v_fmac_f32 v{s2}, v{H1[r]}, v{H1[r]}")
    allreduce("add", [s1, s2], [tA, tB])
    I(f"s_add_u32 s{sA}, s{sA}, 32")
    I(f"v_mov_b32 v{tA}, s{sA}")
    I(f"ds_write_b64 v{tA}, {vr(s1,2)}")
    I("s_waitcnt lgkmcnt(0)")
    I("s_barrier")
    I(f"v_mov_b32 v{tA}, {STAT+32}")
    I(f"ds_read_b128 {vr(ST[0],4)}, v{tA}")
    I(f"ds_read_b128 {vr(ST[4],4)}, v{tA} offset:16")
    I("s_waitcnt lgkmcnt(0)")
    I(f"v_add_f32 v{mean}, v{ST[0]}, v{ST[2]}")
    I(f"v_add_f32 v{tA}, v{ST[4]}, v{ST[6]}")
    I(f"v_add_f32 v{var}, v{ST[1]}, v{ST[3]}")
    I(f"v_add_f32 v{tB}, v{ST[5]}, v{ST[7]}")
    I(f"v_add_f32 v{mean}, v{mean}, v{tA}")
    I(f"v_add_f32 v{var}, v{var}, v{tB}")
    I(f"v_mul_f32 v{mean}, 0x{f2u(1/1024):08x}, v{mean}")
    I(f"v_mul_f32 v{var}, 0x{f2u(1/1024):08x}, v{var}")
    I(f"v_fma_f32 v{var}, -v{mean}, v{mean}, v{var}")
    I(f"v_max_f32 v{var}, 0, v{var}")
    HH = S[48:52]
    ln_finish(mean, var, H1, HH)
    IX = T[4:8]
    for r in range(4):
        I(f"v_bfe_u32 v{IX[r]}, v{HH[r]}, 16, 15")
    for r in range(4):
        I(f"v_subrev_u32 v{IX[r]}, {114 << 7}, v{IX[r]}")
    I(f"v_max_u32 v{T[8]}, v{IX[0]}, v{IX[1]}")
    I(f"v_max3_u32 v{T[8]}, v{T[8]}, v{IX[2]}, v{IX[3]}")
    I(f"v_cmp_lt_u32 vcc, 2047, v{T[8]}")
    I(f"s_mov_b64 s[{sE0}:{sE1}], vcc")
    for r in range(4):
        I(f"v_min_u32 v{T[12+r]}, 2047, v{IX[r]}")
        I(f"v_lshrrev_b32 v{T[16+r]}, 31, v{HH[r]}")
    for r in range(4):
        I(f"v_lshl_or_b32 v{T[12+r]}, v{T[16+r]}, 11, v{T[12+r]}")
    for r in range(4):
        I(f"v_lshlrev_b32 v{T[12+r]}, 2, v{T[12+r]}")
    for r in range(4):
        I(f"ds_read_b32 v{Y[r]}, v{T[12+r]} offset:{TBL}")
    I("s_waitcnt lgkmcnt(0)")
    for r in range(4): I(f"v_add_f32 v{Y[r]}, v{Y[r]}, v{H[r]}")
    I(f"v_cvt_pk_bf16_f32 v{T[20]}, v{Y[0]}, v{Y[1]}")
    I(f"v_cvt_pk_bf16_f32 v{T[21]}, v{Y[2]}, v{Y[3]}")
    U(f"buffer_store_dwordx2 {vr(T[20],2)}, v{XA}, {srd(sOUT)}, 0 offen")
    stamp("out")
    I(f"s_cmp_eq_u64 s[{sE0}:{sE1}], 0")
    skip = A.label("fb_skip")
    I(f"s_cbranch_scc1 {skip}")
    for r in range(4):
        I(f"v_cmp_lt_u32 vcc, 2047, v{IX[r]}")
        I(f"s_and_saveexec_b64 s[{sE0}:{sE1}], vcc")
        nx = A.label("fb_nx")
        I(f"s_cbranch_execz {nx}")
        I(f"v_mov_b32 v{T[0]}, {FBN}")
        I(f"v_mov_b32 v{T[1]}, 1")
        I(f"ds_add_rtn_u32 v{T[1]}, v{T[0]}, v{T[1]}")
        I("s_waitcnt lgkmcnt(0)")
        I(f"v_lshlrev_b32 v{T[1]}, 4, v{T[1]}")
        I(f"v_mov_b32 v{T[24]}, v{HH[r]}")
        I(f"v_mov_b32 v{T[25]}, v{H[r]}")
        I(f"v_add_u32 v{T[26]}, {2*r}, v{XA}")
        I(f"v_mov_b32 v{T[27]}, 0")
        I(f"ds_write_b128 v{T[1]}, {vr(T[24],4)} offset:{FLIST}")
        I(f"{nx}:")
        I("s_mov_b64 exec, -1")
    I(f"{skip}:")
    I("s_waitcnt vmcnt(0) lgkmcnt(0)")
    I("s_barrier")
    I(f"v_mov_b32 v{T[0]}, {FBN}")
    I(f"ds_read_b32 v{T[1]}, v{T[0]}")
    I("s_waitcnt lgkmcnt(0)")
    I(f"v_readfirstlane_b32 s{sC}, v{T[1]}")
    I(f"s_cmp_eq_u32 s{sC}, 0")
    I("s_cbranch_scc1 L_exit")
    I(f"s_mov_b32 s{sD}, 0")
    lp = A.label("fb_lp")
    PF = T[28:42]
    I(f"{lp}:")
    I(f"s_lshl_b32 s{sA}, s{sD}, 4")
    I(f"v_mov_b32 v{T[42]}, s{sA}")
    I(f"ds_read_b128 {vr(T[44],4)}, v{T[42]} offset:{FLIST}")
    I(f"v_mov_b32 v{T[48]}, 0")
    I("s_waitcnt lgkmcnt(0)")
    I(f"v_readfirstlane_b32 s{sS}, v{T[44]}")
    mlp_prod(PF)
    mlp_act(T[48], PF, False)
    allreduce("add", [T[48]], [T[49]])
    I(f"s_and_b32 s{sA}, s{sD}, 1")
    I(f"s_lshl_b32 s{sA}, s{sA}, 4")
    I(f"s_add_u32 s{sA}, s{sA}, {FBP}")
    I(f"s_lshl_b32 s{sB}, s{sW}, 2")
    I(f"s_add_u32 s{sB}, s{sB}, s{sA}")
    I(f"v_mov_b32 v{T[49]}, s{sB}")
    I(f"ds_write_b32 v{T[49]}, v{T[48]}")
    I("s_waitcnt lgkmcnt(0)")
    I("s_barrier")
    I(f"v_mov_b32 v{T[49]}, s{sA}")
    I(f"ds_read_b128 {vr(T[52],4)}, v{T[49]}")
    I("s_waitcnt lgkmcnt(0)")
    I(f"v_add_f32 v{T[52]}, v{T[52]}, v{T[53]}")
    I(f"v_add_f32 v{T[54]}, v{T[54]}, v{T[55]}")
    I(f"v_add_f32 v{T[52]}, v{T[52]}, v{T[54]}")
    rnd(T[52])
    I(f"v_add_f32 v{T[52]}, v{T[52]}, v{vB2}")
    rnd(T[52])
    I(f"v_add_f32 v{T[52]}, v{T[52]}, v{T[45]}")
    I(f"v_cvt_pk_bf16_f32 v{T[52]}, v{T[52]}, v{T[52]}")
    I(f"v_cmp_eq_u32 vcc, 0, v{vTid}")
    I(f"v_mov_b32 v{T[53]}, {OOB}")
    I(f"v_cndmask_b32 v{T[53]}, v{T[53]}, v{T[46]}, vcc")
    U(f"buffer_store_short v{T[52]}, v{T[53]}, {srd(sOUT)}, 0 offen")
    I(f"s_add_u32 s{sD}, s{sD}, 1")
    I(f"s_cmp_lt_u32 s{sD}, s{sC}")
    I(f"s_cbranch_scc1 {lp}")

    I("L_exit:")
    write_stamps()
    I("L_end:")

    ref = open("sequential_preLN__gqa_block_cached__mixer_token_mlp__decode.s.ref").read().split("\n")
    hdr = "\n".join(l for l in ref[:ref.index([x for x in ref if x.startswith("; @launch")][0])]) + "\n"
    hdr += "; layout: ap8\n"
    if cfg.profile: hdr += "; stamps:" + ",".join(cfg.stampset) + "\n"
    head = hdr + f"""; @launch grid=(256,1,1) block=(256,1,1) lds={LDS_BYTES}
.amdgcn_target "amdgcn-amd-amdhsa--gfx950"
.text
.globl {NAME}
.p2align 8
.type {NAME},@function
{NAME}:
"""
    tail = f"""  s_endpgm
.section .rodata,"a"
.p2align 6
.amdhsa_kernel {NAME}
  .amdhsa_next_free_vgpr 512
  .amdhsa_next_free_sgpr 102
  .amdhsa_accum_offset 256
  .amdhsa_group_segment_fixed_size 0
  .amdhsa_kernarg_size 104
  .amdhsa_user_sgpr_count 2
  .amdhsa_user_sgpr_kernarg_segment_ptr 1
  .amdhsa_system_sgpr_workgroup_id_x 1
.end_amdhsa_kernel
"""
    return head + A.text() + tail


if __name__ == "__main__":
    cfg = Cfg()
    out = sys.argv[1]
    for kv in sys.argv[2:]:
        k, v = kv.split("=", 1)
        setattr(cfg, k, eval(v))
    txt = gen(cfg)
    open(out, "w").write(txt)
    print("written", out, len(txt), "bytes", txt.count("\n"), "lines; stamps:", ",".join(cfg.stampset) if cfg.profile else "")
```
